```python
import torch

def _softmax(x, axis=-1):
    return torch.softmax(x, dim=axis)
def _gelu(x):
    return torch.nn.functional.gelu(x, approximate="tanh")
def _silu(x):
    return torch.nn.functional.silu(x)
def _sigmoid(x):
    return torch.sigmoid(x)
def _layernorm(x, axis=-1, eps=1e-5):
    m = x.mean(dim=axis, keepdim=True)
    v = x.var(dim=axis, keepdim=True, unbiased=False)
    return (x - m) / torch.sqrt(v + eps)
def _scatter_add(tgt, idx, src, axis=0):
    return tgt.clone().index_add_(axis, idx, src)
def _segment_sum(src, seg, n):
    out = torch.zeros((n,) + src.shape[1:], dtype=src.dtype)
    return out.index_add_(0, seg, src)
def _pad(x, pw):
    flat = tuple(v for pair in reversed(pw) for v in pair)
    return torch.nn.functional.pad(x, flat)

kernel_name = 'recurrent_scan__gqa_block_cached__glu_gated_glu__prompt'

def setup_inputs():

    _w = (lambda a: (lambda t: t.to(torch.bfloat16) if t.is_floating_point() else t)(torch.as_tensor(a)))
    def _A_setup():
        B, Sq, D = 1, 2048, 512
        Hq, Hkv, Sk, Dh = 32, 8, 2048, 128
        assert Hq % Hkv == 0, (Hq, Hkv)
        return {
            "x": _w((lambda *s: torch.randn(*s, dtype=torch.bfloat16) * 0.05)(B, Sq, D)),
            "k_cache": _w((lambda *s: torch.randn(*s, dtype=torch.bfloat16) * 1.6)(B, Hkv, Sk, Dh)),
            "v_cache": _w((lambda *s: torch.randn(*s, dtype=torch.bfloat16) * 0.2)(B, Hkv, Sk, Dh)),
            "wq": _w((lambda *s: torch.randn(*s, dtype=torch.bfloat16) * 1.6)(D, Hq * Dh) * (D ** -0.5)),
            "wo": _w((lambda *s: torch.randn(*s, dtype=torch.bfloat16) * 0.2)(Hq * Dh, D) * ((Hq * Dh) ** -0.5)),
        }
    _A_in = _A_setup()

    def _B_setup():
        B, S, D, F = 1, 2048, 512, 1792
        return {
            "x": _w((lambda *s: torch.randn(*s, dtype=torch.bfloat16) * 0.05)(B, S, D)),
            "w_gate": _w((lambda *s: torch.randn(*s, dtype=torch.bfloat16) * 0.2)(D, F)),
            "w_up": _w((lambda *s: torch.randn(*s, dtype=torch.bfloat16) * 0.1)(D, F)),
            "w_down": _w((lambda *s: torch.randn(*s, dtype=torch.bfloat16) * 0.1)(F, D)),
        }
    _B_in = _B_setup()

    return {
        "A_x": _A_in["x"],
        "A_k_cache": _A_in["k_cache"],
        "A_v_cache": _A_in["v_cache"],
        "A_wq": _A_in["wq"],
        "A_wo": _A_in["wo"],
        "B_x": _B_in["x"],
        "B_w_gate": _B_in["w_gate"],
        "B_w_up": _B_in["w_up"],
        "B_w_down": _B_in["w_down"],
    }

def reference(A_x, A_k_cache, A_v_cache, A_wq, A_wo, B_x, B_w_gate, B_w_up, B_w_down):
    def _A_ref(x, k_cache, v_cache, wq, wo):
        B, Sq, D = x.shape
        Hq, Dh = 32, 128
        Hkv = k_cache.shape[1]
        rep = Hq // Hkv
        q = (lambda x, *d: x.permute(*d))((x @ wq).reshape(B, Sq, Hq, Dh), 0, 2, 1, 3)
        k = (lambda x, n, axis: torch.repeat_interleave(x, n, dim=axis))(k_cache, rep, axis=1)
        v = (lambda x, n, axis: torch.repeat_interleave(x, n, dim=axis))(v_cache, rep, axis=1)
        scores = torch.einsum("bhqd,bhkd->bhqk", q, k) * (Dh ** -0.5)
        p = _softmax(scores, axis=-1)
        o = torch.einsum("bhqk,bhkd->bhqd", p, v)
        return (lambda x, *d: x.permute(*d))(o, 0, 2, 1, 3).reshape(B, Sq, Hq * Dh) @ wo

    def _B_ref(x, w_gate, w_up, w_down):
        g = torch.einsum("bsd,df->bsf", x, w_gate)
        u = torch.einsum("bsd,df->bsf", x, w_up)
        h = _sigmoid(g) * u
        return torch.einsum("bsf,fd->bsd", h, w_down)

    x = A_x
    xn = _layernorm(x, axis=-1)
    s = _A_ref(xn, A_k_cache, A_v_cache, A_wq, A_wo)
    g = _silu(_B_ref(xn, B_w_gate, B_w_up, B_w_down))
    return x + s * g
```

```python
import re

REG = re.compile(r'^(-|abs\()?([vas])(\d+|\[(\d+):(\d+)\])\)?$')
TRANS = ('v_exp_f32', 'v_log_f32', 'v_rcp_f32', 'v_rsq_f32', 'v_sqrt_f32', 'v_sin_f32', 'v_cos_f32')
RMW = ('v_fmac_f32', 'v_dot2c', 'v_pk_fmac')

def regs(tok):
    tok = tok.strip()
    if tok in ('vcc', 'exec', 'm0', 'scc'):
        return {tok}
    if tok in ('vcc_lo', 'vcc_hi'):
        return {'vcc'}
    m = REG.match(tok)
    if not m:
        return set()
    c = m.group(2)
    if m.group(4) is not None:
        return {f"{c}{i}" for i in range(int(m.group(4)), int(m.group(5)) + 1)}
    return {f"{c}{m.group(3)}"}

class Ins:
    __slots__ = ('text', 'mn', 'rd', 'wr', 'kind', 'states', 'srcc', 'srcab', 'wide_store', 'vmem_sgpr')
    def __init__(self, text):
        self.text = text
        t = text.split(';')[0].strip()
        self.rd = set(); self.wr = set(); self.srcc = set(); self.srcab = set()
        self.wide_store = set(); self.vmem_sgpr = set()
        self.states = 1
        if not t or t.endswith(':') or t.startswith('.'):
            self.mn = ''; self.kind = 'label' if t.endswith(':') else 'dir'; self.states = 0
            return
        p = t.split(None, 1)
        mn = self.mn = p[0]
        rest = p[1] if len(p) > 1 else ''
        rest = re.sub(r'\s(op_sel|op_sel_hi|neg_lo|neg_hi):\[[^\]]*\]', '', rest)
        ops = [o.strip() for o in rest.split(',')] if rest else []
        if ops:
            last = ops[-1].split()
            mods = last[1:]
            ops[-1] = last[0] if last else ''
        else:
            mods = []
        R = lambda i: regs(ops[i]) if i < len(ops) else set()
        allr = lambda a: set().union(*[regs(o) for o in ops[a:]]) if len(ops) > a else set()
        if mn.startswith('v_mfma') or mn.startswith('v_smfmac'):
            self.kind = 'mfma'; self.wr = R(0); self.srcab = R(1) | R(2); self.srcc = R(3)
            if mn.startswith('v_smfmac'):
                self.srcab |= R(3); self.srcc = R(0)
            self.rd = self.srcab | self.srcc
        elif mn.startswith('v_'):
            self.kind = 'valu'
            if mn.startswith('v_permlane'):
                self.wr = R(0) | R(1); self.rd = R(0) | R(1)
            elif mn.startswith('v_nop'):
                pass
            else:
                self.wr = R(0); self.rd = allr(1)
                if mn.startswith(RMW): self.rd |= R(0)
                if mn.startswith(('v_add_co', 'v_addc_co', 'v_sub_co')):
                    self.wr |= R(1); self.rd = allr(2)
                if mn.startswith('v_cmpx'): self.wr |= {'exec'}
        elif mn.startswith('ds_'):
            self.kind = 'ds'
            if mn.startswith(('ds_read', 'ds_bpermute', 'ds_swizzle', 'ds_permute')) or '_rtn' in mn:
                self.wr = R(0); self.rd = allr(1)
            else:
                self.rd = allr(0)
        elif mn.startswith(('buffer_', 'global_')):
            self.kind = 'vmem'
            lds = 'lds' in mods or '_lds_' in mn
            if mn.startswith(('buffer_wbl2', 'buffer_inv')):
                pass
            elif 'load' in mn and not lds:
                self.wr = R(0); self.rd = allr(1)
            else:
                self.rd = allr(0)
                if lds: self.rd |= {'m0'}
                if 'atomic' in mn and 'sc0' in mods: self.wr = R(0)
                if 'store' in mn and mn.endswith(('x3', 'x4')):
                    self.wide_store = R(0) if mn.startswith('buffer_') else R(1)
            self.vmem_sgpr = {r for r in self.rd if r[0] == 's'}
        elif mn.startswith('s_'):
            self.kind = 'salu'
            if mn == 's_nop':
                self.states = int(ops[0], 0) + 1
            elif mn.startswith(('s_cmp', 's_waitcnt', 's_barrier', 's_branch', 's_cbranch', 's_endpgm', 's_setprio', 's_sleep', 's_bitcmp')):
                self.rd = allr(0)
            else:
                self.wr = R(0); self.rd = allr(1)
                if 'saveexec' in mn: self.wr |= {'exec'}
        else:
            raise ValueError("unknown instruction: " + text)

def passes(mn):
    if '32x32' in mn: return 8
    if '4x4' in mn: return 2
    return 4

def need(p, c):
    n = 0
    vw = {r for r in p.wr if r[0] in 'va' and r not in ('vcc',)}
    sw = {r for r in p.wr if r[0] == 's' or r == 'vcc'}
    if p.kind == 'valu':
        if c.kind == 'mfma' and vw & c.rd: n = max(n, 2)
        if c.kind == 'mfma' and 'exec' in p.wr: n = max(n, 4)
        if c.mn.startswith('v_permlane') and vw & c.rd: n = max(n, 2)
        if c.mn.startswith(('v_readfirstlane', 'v_readlane')) and vw & c.rd: n = max(n, 1)
        if ('dpp' in c.text or 'row_' in c.text or 'quad_perm' in c.text) and c.kind == 'valu' and vw & c.rd: n = max(n, 2)
        if p.mn.startswith(TRANS) and c.kind in ('valu', 'mfma') and not c.mn.startswith(TRANS) and vw & c.rd: n = max(n, 1)
        if p.mn.startswith(TRANS) and c.kind in ('ds', 'vmem') and vw & c.rd: n = max(n, 1)
        if c.kind == 'valu' and sw & c.rd: n = max(n, 2)
        if c.kind == 'valu' and c.mn.startswith('v_cndmask') and 'vcc' in p.wr: n = max(n, 2)
        if c.kind == 'vmem' and sw & c.vmem_sgpr: n = max(n, 5)
        if c.kind == 'salu' and sw & c.rd: n = max(n, 1)
        if c.kind == 'salu' and c.mn.startswith('s_cbranch_vcc') and 'vcc' in p.wr: n = max(n, 1)
    if p.kind == 'mfma':
        ps = passes(p.mn)
        big = {2: 5, 4: 8, 8: 12}[ps]
        if c.kind == 'mfma':
            if p.wr & c.srcab: n = max(n, big)
            if p.wr & c.srcc:
                same = p.wr == c.srcc and passes(c.mn) == ps
                n = max(n, (2 if ps == 2 else 0) if same else {2: 4, 4: 6, 8: 10}[ps])
            if p.wr & c.wr and not (p.wr & c.srcc): n = max(n, {2: 4, 4: 6, 8: 10}[ps])
        elif c.kind in ('valu', 'ds', 'vmem'):
            if p.wr & (c.rd | c.wr): n = max(n, big)
            if c.kind == 'valu' and p.srcc & c.wr: n = max(n, {2: 1, 4: 3, 8: 7}[ps])
    if p.kind == 'vmem' and p.wide_store and (p.wide_store & c.wr): n = max(n, 2)
    if p.kind == 'salu' and 'm0' in p.wr and 'm0' in c.rd: n = max(n, 1)
    return n

class Asm:
    def __init__(self):
        self.ins = []
    def __call__(self, text):
        for line in text.split('\n'):
            line = line.strip()
            if line:
                self.ins.append(Ins(line))
    def extend(self, lst):
        for t in lst: self(t)
    def mark(self):
        return len(self.ins)
    def fix_hazards(self, verbose=True, window=24):
        out = []; added = []
        for c in self.ins:
            if c.kind not in ('label', 'dir'):
                dist = 0; short = 0; culprit = None
                for p in reversed(out[-window * 2:]):
                    if dist >= 12: break
                    if p.kind in ('label', 'dir'): continue
                    if p.mn in ('s_branch', 's_endpgm'): break
                    k = need(p, c) - dist
                    if k > short: short = k; culprit = p
                    dist += p.states
                if short > 0:
                    out.append(Ins(f"s_nop {short - 1}")); added.append((short, culprit.text, c.text))
            out.append(c)
        self.ins = out
        labels = {i.text.split(':')[0].strip(): k for k, i in enumerate(out) if i.kind == 'label'}
        bad = []
        for k, b in enumerate(out):
            if b.mn.startswith(('s_branch', 's_cbranch')):
                tgt = b.text.split()[1]
                if tgt not in labels: continue
                pre = [i for i in out[max(0, k - window):k + 1] if i.kind not in ('label', 'dir')]
                post = [i for i in out[labels[tgt]:labels[tgt] + window] if i.kind not in ('label', 'dir')]
                for a, p in enumerate(pre):
                    d0 = sum(x.states for x in pre[a + 1:])
                    d = d0
                    for c in post:
                        if d >= 12: break
                        if need(p, c) > d: bad.append((p.text, c.text, tgt))
                        d += c.states
                        if c.mn in ('s_branch', 's_endpgm'): break
        if verbose:
            for s in added: print("; nop", s)
        for s in bad: print("BRANCH-EDGE HAZARD", s)
        assert not bad
        return added
    def text(self):
        return "\n".join(("" if i.kind == 'label' else "    ") + i.text for i in self.ins) + "\n"
```

```python
import math, struct, sys
from asmlib import Asm

NAME = "recurrent_scan__gqa_block_cached__glu_gated_glu__prompt"
OPT = dict(stamps=False)

def f32(x): return "0x%08x" % struct.unpack("<I", struct.pack("<f", x))[0]
def vr(b, n=4): return f"v[{b}:{b+n-1}]"
def ar(b, n=4): return f"a[{b}:{b+n-1}]"
def mfma(d, a, b, c): return f"v_mfma_f32_16x16x32_bf16 {d}, {a}, {b}, {c}"

LDS_A = 0
LDS_R = 65536
RING = 24576
LDS_K = LDS_R
LDS_V = LDS_R + 49152
LDS_FLAG = LDS_R + 5 * 4096
LDS_TOTAL = 163840

S_X, S_K, S_V, S_WQ, S_WO, S_WG, S_WU, S_WD, S_WS = 4, 8, 12, 16, 20, 24, 28, 32, 36
sG, sRB, sW, sROT, sROT7, sRING = 40, 41, 42, 43, 44, 45
sOFF = {'gu': 46, 'q': 47, 'd': 48, 'o': 49}
sTMP, sT1, sT2, sT3 = 50, 51, 52, 53
sKOFF, sVOFF, sKM0, sVM0, sIT, sREDO = 54, 55, 56, 57, 58, 59
sC0, sC1 = 60, 61
def srd(b): return f"s[{b}:{b+3}]"

vLANE16 = 1
vT = list(range(2, 10))
vANAT, vAACC = 10, 14
vVO = {'gu': 18, 'q': 22, 'd': 26, 'o': 30}
vKA, vVA, vKD, vVD = 34, 38, 46, 50
vRS, vSD, vMT = 52, 56, 60
vQ = 64
vX = 128
vS = [128, 160]; vP = [192, 208]; vNM = 224; vE = 240
aF, aB, aPRE, aONE, aL, aO = 0, 16, 48, 108, 112, 128

GEMM = {
    'gu': dict(nk=16, stride=3584, nat=True, two=True),
    'q':  dict(nk=16, stride=8192, nat=True, two=False),
    'd':  dict(nk=7, stride=1024, nat=False, two=False),
    'o':  dict(nk=16, stride=1024, nat=False, two=False),
}
SRD_OF = {'q': S_WQ, 'd': S_WD, 'o': S_WO}

class UnitStream:
    def __init__(self, names):
        self.units = [(n, s, h) for n in names for s in range(GEMM[n]['nk']) for h in range(2)]
        self.pos = 0
        self.first = {}
        for k, (n, s, h) in enumerate(self.units): self.first.setdefault(n, k)
    def remaining(self): return len(self.units) * 4 - self.pos
    def next(self):
        u, i = divmod(self.pos, 4); self.pos += 1
        n, s, h = self.units[u]; G = GEMM[n]
        pre, post = [], []
        if i == 0:
            pre.append(f"s_add_u32 m0, s{sRING}, {(u % 6) * 4096}")
            if h == 1 and not G['two']: pre.append(f"s_add_u32 s{sTMP}, s{sOFF[n]}, 128")
        sr = (S_WG, S_WU)[h] if G['two'] else SRD_OF[n]
        so = sTMP if (h == 1 and not G['two']) else sOFF[n]
        d = f"buffer_load_dwordx4 v{vVO[n] + i}, {srd(sr)}, s{so} offen offset:{i * 1024} lds"
        if i == 3 and h == 1 and s < G['nk'] - 1:
            step = 32 * G['stride']
            post += [f"s_add_u32 s{sOFF[n]}, s{sOFF[n]}, {step}",
                     f"s_cmp_eq_u32 s{sOFF[n]}, {step * G['nk']}",
                     f"s_cselect_b32 s{sOFF[n]}, 0, s{sOFF[n]}"]
        return pre, d, post
    def emit(self, A, count):
        for _ in range(count):
            pre, d, post = self.next()
            A.extend(pre)
            if pre: A("s_nop 0")
            A(d); A.extend(post)

def gemm(A, name, US, vm_extra=0):
    G = GEMM[name]; nk = G['nk']
    u0 = US.first[name]
    addr = vANAT if G['nat'] else vAACC
    uoff = 512 if G['nat'] else 2048
    ng = nk * 8
    def tr(n):
        u = u0 + n // 4; b = aF + 4 * (n % 4); o = (u % 6) * 4096
        return [f"ds_read_b64_tr_b16 {ar(b, 2)}, v{addr + n % 4} offset:{o}",
                f"ds_read_b64_tr_b16 {ar(b + 2, 2)}, v{addr + n % 4} offset:{o + uoff}"]
    def bread(s, tb):
        return f"ds_read_b128 {ar(aB + 16 * (s % 2) + 4 * tb)}, v{vLANE16} offset:{LDS_A + (s * 4 + tb) * 1024}"
    def vmneed(u, extra=0):
        return US.pos - (u + 1) * 4 + extra
    A(f"s_waitcnt vmcnt({vmneed(u0, vm_extra)})")
    for tb in range(4): A(bread(0, tb))
    A.extend(tr(0)); A.extend(tr(1))
    A("s_waitcnt lgkmcnt(2)")
    pend = []
    nb_prev = 0
    for n in range(ng):
        s, nb = divmod(n, 8)
        gaps = [[], [], [], []]
        if n + 2 < ng: gaps[0] += tr(n + 2)
        can = US.remaining() > 0 and US.pos // 4 <= u0 + n // 4 + 5
        if can:
            pre, d, post = US.next()
            scal = pend + pre; pend = post
            gaps[0] = scal[-1:] + gaps[0]
            carry = scal[:-1]
            gaps[1] = [d]
        else:
            carry = pend; pend = []
        A.extend(carry)
        nb_now = 1 if (1 <= nb <= 4 and s + 1 < nk) else 0
        if nb_now: gaps[2].append(bread(s + 1, nb - 1))
        if n + 1 < ng:
            lg = (2 if n + 2 < ng else 0) + nb_now + nb_prev
            w = f"lgkmcnt({lg})"
            if (n + 3) % 4 == 0 and n + 3 < ng:
                w = f"vmcnt({vmneed(u0 + (n + 3) // 4)}) " + w
            gaps[3].append("s_waitcnt " + w)
        nb_prev = nb_now
        for tb in range(4):
            d = vr(vX + (nb * 4 + tb) * 4)
            A(mfma(d, ar(aF + 4 * (n % 4)), ar(aB + 16 * (s % 2) + 4 * tb), d if s else "0"))
            A.extend(gaps[tb])
    A.extend(pend)

def store_partials(A, extra_off):
    A(f"s_mov_b32 s{sT1}, {extra_off}")
    for a in range(4):
        for tb in range(4):
            lo = vX + ((2 * a) * 4 + tb) * 4; hi = vX + ((2 * a + 1) * 4 + tb) * 4
            A(f"v_cvt_pk_bf16_f32 v{lo}, v{lo}, v{lo+1}")
            A(f"v_cvt_pk_bf16_f32 v{lo+1}, v{lo+2}, v{lo+3}")
            A(f"v_cvt_pk_bf16_f32 v{lo+2}, v{hi}, v{hi+1}")
            A(f"v_cvt_pk_bf16_f32 v{lo+3}, v{hi+2}, v{hi+3}")
            A(f"buffer_store_dwordx4 {vr(lo)}, v{vLANE16}, {srd(S_WS)}, s{sT1} offen offset:{tb * 1024}")
        if a < 3: A(f"s_add_u32 s{sT1}, s{sT1}, 4096")

def kread(buf, j, off): return [f"ds_read_b128 {buf}, v{vKA + j} offset:{off}"]
def vread(b, db, off):
    return [f"ds_read_b64_tr_b16 {ar(b, 2)}, v{vVA + db} offset:{off}",
            f"ds_read_b64_tr_b16 {ar(b + 2, 2)}, v{vVA + db} offset:{off + 4096}"]
def kdma(i): return f"buffer_load_dwordx4 v{vKD + i}, {srd(S_K)}, s{sKOFF} offen offset:{i * 1024} lds"
def vdma(i): return f"buffer_load_dwordx4 v{vVD + i % 2}, {srd(S_V)}, s{sVOFF} offen offset:{i * 1024} lds"
def adv(s): return [f"s_add_u32 s{s}, s{s}, 16384", f"s_and_b32 s{s}, s{s}, 0x7ffff"]

def group_reads(n, koff, voff):
    b = aF + 4 * (n % 4)
    if n < 8: return kread(ar(b), n % 4, koff + (n // 4) * 4096)
    return vread(b, n - 8, voff)

def pv_mfma(n, qb, P):
    d = ar(aO + ((n - 8) * 4 + qb) * 4)
    return mfma(d, ar(aF + 4 * (n % 4)), vr(P + 4 * qb), d)
def sum_mfma(qb, P):
    d = ar(aL + 4 * qb)
    return mfma(d, ar(aONE), vr(P + 4 * qb), d)

def step(A, par, koff, voff, look, dma, sync_vm, tail=()):
    Sc, Sn, Pc, Pp = vS[par], vS[1 - par], vP[par], vP[1 - par]
    def ex(e):
        qb, kb, r = e // 8, (e // 4) % 2, e % 4
        x = Sc + (kb * 4 + qb) * 4 + r
        return f"v_exp_f32 v{x}, v{x}"
    def cv(k):
        qb, kb, h = k // 4, (k // 2) % 2, k % 2
        x = Sc + (kb * 4 + qb) * 4 + 2 * h
        return f"v_cvt_pk_bf16_f32 v{Pc + k}, v{x}, v{x + 1}"
    nrd = lambda m: 1 if m < 8 else 2
    post = list(dma[2]) if dma else []
    for n in range(16):
        g = [[], [], [], []]
        rd = group_reads(n + 2, koff, voff) if n + 2 < 16 else []
        c = [cv(n - 1)] if n >= 1 else []
        e0, e1 = ex(2 * n), ex(2 * n + 1)
        if n < 15:
            lg = nrd(n + 2) if n + 2 < 16 else 0
            w = f"s_waitcnt lgkmcnt({lg})"
            if n == 14 and sync_vm is not None: w = f"s_waitcnt vmcnt({sync_vm}) lgkmcnt(0)"
        if n == 15:
            if sync_vm is not None: g[0] = ["s_barrier"]
            if len(look[0]) == 1: g[1] = look[0] + c; g[2] = [e0]; g[3] = [e1]
            else: g[1] = look[0]; g[2] = [e0]; g[3] = [e1]
        elif dma and n < 4:
            g[0] = ([dma[0]] if n == 0 else []) + rd + c
            g[1] = [dma[1][n]]; g[2] = [e0]; g[3] = [w, e1]
        elif len(rd) == 2:
            g[0] = rd; g[1] = [e0]; g[2] = c; g[3] = [w, e1]
        else:
            g[0] = rd + c; g[1] = [e0]; g[3] = [w, e1]
            if post: g[1] = [post.pop(0)] + g[1]
        for qb in range(4):
            if n < 8:
                kb, j = n // 4, n % 4
                d = vr(Sn + (kb * 4 + qb) * 4)
                A(mfma(d, ar(aF + 4 * (n % 4)), vr(vQ + (qb * 4 + j) * 4), d if j else vr(vNM + 4 * qb)))
            else:
                A(pv_mfma(n, qb, Pp))
            A.extend(g[qb])
    assert not post
    two = len(look[0]) == 2
    g = [look[1] + ([] if two else [cv(15)]), [cv(14), cv(15)] if two else [], [], [f"s_waitcnt lgkmcnt({len(look[1])})"]]
    tail = list(tail)
    if tail:
        g[1] = [tail[0]] + g[1]; g[2] = [tail[1]]; g[3] = g[3] + [tail[2]]
    for qb in range(4):
        A(sum_mfma(qb, Pp)); A.extend(g[qb])

def iteration(A, slot, kd=True, vd=True, sync_vm=8, last=False, tail=()):
    ks, vs, nx = slot * 16384, slot * 16384, ((slot + 1) % 3) * 16384
    ds = ((slot + 2) % 3) * 16384
    dk = (f"s_add_u32 m0, s{sKM0}, {ds}", [kdma(i) for i in range(4)], adv(sKOFF)) if kd else None
    dv = (f"s_add_u32 m0, s{sVM0}, {ds}", [vdma(i) for i in range(4)], adv(sVOFF)) if vd else None
    step(A, 0, ks, vs, [group_reads(0, ks + 8192, 0), group_reads(1, ks + 8192, 0)], dk, None)
    if last: look = [vread(aF, 0, nx), vread(aF + 4, 1, nx)]
    else: look = [group_reads(0, nx, 0), group_reads(1, nx, 0)]
    step(A, 1, ks + 8192, vs + 8192, look, dv, sync_vm, tail)

def xlane_max(A, m, t):
    A(f"v_mov_b32 v{t}, v{m}"); A(f"v_permlane32_swap_b32 v{m}, v{t}"); A(f"v_max_f32 v{m}, v{m}, v{t}")
    A(f"v_mov_b32 v{t}, v{m}"); A(f"v_permlane16_swap_b32 v{m}, v{t}"); A(f"v_max_f32 v{m}, v{m}, v{t}")

def stamp(A, k):
    if not OPT['stamps']: return
    A(f"s_memtime s[{64 + 2 * k}:{65 + 2 * k}]\ns_waitcnt lgkmcnt(0)")

def main_kernel():
    A = Asm()
    t = vT
    A("main_kernel:")
    A("s_cmp_ge_u32 s2, 256\ns_cbranch_scc1 L_end")
    A("s_load_dwordx16 s[64:79], s[0:1], 0\ns_load_dwordx4 s[80:83], s[0:1], 64\ns_load_dwordx4 s[84:87], s[0:1], 80")
    A(f"v_lshrrev_b32 v{t[0]}, 6, v0\nv_and_b32 v0, 63, v0\nv_readfirstlane_b32 s{sW}, v{t[0]}")
    A(f"s_and_b32 s{sG}, s2, 7\ns_lshr_b32 s{sRB}, s2, 3\ns_and_b32 s{sROT}, s{sRB}, 15")
    A(f"s_mul_i32 s{sT1}, s{sRB}, 37\ns_lshr_b32 s{sT1}, s{sT1}, 8\ns_mul_i32 s{sT1}, s{sT1}, 7\ns_sub_u32 s{sROT7}, s{sRB}, s{sT1}")
    A(f"v_lshlrev_b32 v{vLANE16}, 4, v0")
    A("s_waitcnt lgkmcnt(0)")
    def mk(sr, p, size):
        A(f"s_add_u32 s{sr}, s{p}, s{sT1}\ns_addc_u32 s{sr+1}, s{p+1}, 0\ns_sub_u32 s{sr+2}, {size}, s{sT1}\ns_mov_b32 s{sr+3}, 0x20000")
    A(f"s_lshl_b32 s{sT1}, s{sRB}, 16"); mk(S_X, 64, 2048 * 1024)
    A(f"v_and_b32 v{t[0]}, 15, v0\nv_lshrrev_b32 v{t[1]}, 4, v0\ns_lshl_b32 s{sT2}, s{sW}, 14")
    A(f"v_lshlrev_b32 v{t[2]}, 10, v{t[0]}\nv_lshl_add_u32 v{t[2]}, v{t[1]}, 4, v{t[2]}\nv_add_u32 v{t[2]}, s{sT2}, v{t[2]}")
    A(f"s_lshl_b32 s{sT2}, s{sROT}, 6")
    for jj in range(16):
        A(f"buffer_load_dwordx4 {vr(vX + 4 * jj)}, v{t[2]}, {srd(S_X)}, s{sT2} offen")
        if jj < 15: A(f"s_add_u32 s{sT2}, s{sT2}, 64\ns_and_b32 s{sT2}, s{sT2}, 1023")
    A(f"s_mul_i32 s{sT1}, s{sG}, 448\ns_lshl_b32 s{sT2}, s{sW}, 7\ns_add_u32 s{sT1}, s{sT1}, s{sT2}")
    mk(S_WG, 76, 512 * 3584); mk(S_WU, 78, 512 * 3584)
    A(f"s_lshl_b32 s{sT1}, s{sG}, 10\ns_lshl_b32 s{sT3}, s{sW}, 8\ns_add_u32 s{sT1}, s{sT1}, s{sT3}"); mk(S_WQ, 70, 512 * 8192)
    A(f"s_lshl_b32 s{sT1}, s{sG}, 19\ns_add_u32 s{sT1}, s{sT1}, s{sT3}"); mk(S_WO, 72, 4096 * 1024)
    A(f"s_mul_i32 s{sT1}, s{sG}, {224 * 1024}\ns_add_u32 s{sT1}, s{sT1}, s{sT3}"); mk(S_WD, 80, 1792 * 1024)
    A(f"s_lshl_b32 s{sT1}, s{sG}, 19"); mk(S_K, 66, 8 * 524288); mk(S_V, 68, 8 * 524288)
    A(f"s_mov_b32 s{S_K+2}, 524288\ns_mov_b32 s{S_V+2}, 524288")
    A(f"s_lshl_b32 s{sT1}, s{sG}, 5\ns_add_u32 s{sT1}, s{sT1}, s{sRB}\ns_lshl_b32 s{sT1}, s{sT1}, 2\ns_add_u32 s{sT1}, s{sT1}, s{sW}\ns_lshl_b32 s{sT1}, s{sT1}, 14")
    mk(S_WS, 86, 32 << 20)
    A(f"s_mul_i32 s{sRING}, s{sW}, {RING}\ns_add_u32 s{sRING}, s{sRING}, {LDS_R}")
    for n in GEMM:
        A(f"s_mul_i32 s{sOFF[n]}, s{sROT7 if n == 'd' else sROT}, {32 * GEMM[n]['stride']}")
    A(f"v_lshrrev_b32 v{t[3]}, 3, v0\nv_and_b32 v{t[4]}, 7, v0")
    A(f"v_and_b32 v{t[5]}, 1, v{t[1]}\nv_lshlrev_b32 v{t[5]}, 1, v{t[5]}\nv_xor_b32 v{t[5]}, v{t[5]}, v{t[4]}")
    A(f"v_lshlrev_b32 v{t[6]}, 1, v{t[1]}\nv_xor_b32 v{t[6]}, v{t[6]}, v{t[4]}")
    for n in GEMM:
        st = GEMM[n]['stride']
        A(f"s_mov_b32 s{sT1}, {st}\nv_mul_lo_u32 v{t[7]}, s{sT1}, v{t[3]}")
        for i in range(4):
            d = vVO[n] + i
            if GEMM[n]['nat']: A(f"v_xor_b32 v{d}, {4 * (i % 2)}, v{t[5]}")
            else: A(f"v_mov_b32 v{d}, v{t[6]}")
            if n == 'gu':
                A(f"s_cmp_eq_u32 s{sW}, 3\ns_cselect_b32 s{sT2}, 4, 8\nv_cmp_gt_u32 vcc, s{sT2}, v{d}")
            A(f"v_lshl_add_u32 v{d}, v{d}, 4, v{t[7]}\nv_add_u32 v{d}, {i * (8 * st - 1024)}, v{d}")
            if n == 'gu':
                A(f"v_mov_b32 v{t[2]}, 0x40000000\nv_cndmask_b32 v{d}, v{t[2]}, v{d}, vcc")
    US = UnitStream(['gu', 'q', 'd'])
    US.emit(A, 20)
    A(f"v_bfe_u32 v{t[2]}, v0, 2, 2\nv_and_b32 v{t[3]}, 3, v0")
    A(f"v_lshrrev_b32 v{t[4]}, 1, v{t[2]}\nv_and_b32 v{t[5]}, 1, v{t[1]}\nv_lshl_add_u32 v{t[4]}, v{t[5]}, 1, v{t[4]}")
    A(f"v_lshlrev_b32 v{t[4]}, 5, v{t[4]}\nv_lshl_add_u32 v{t[4]}, v{t[3]}, 3, v{t[4]}\nv_lshl_add_u32 v{t[4]}, v{t[2]}, 7, v{t[4]}\nv_add_u32 v{t[4]}, s{sRING}, v{t[4]}")
    A(f"v_lshl_add_u32 v{vANAT}, v{t[1]}, 10, v{t[4]}\nv_lshl_add_u32 v{vAACC}, v{t[1]}, 9, v{t[4]}")
    for b in range(1, 4):
        A(f"v_xor_b32 v{vANAT + b}, {b << 5}, v{vANAT}\nv_xor_b32 v{vAACC + b}, {b << 5}, v{vAACC}")
    A(f"v_lshrrev_b32 v{t[4]}, 1, v{t[1]}\nv_lshl_add_u32 v{t[4]}, v{t[5]}, 1, v{t[4]}")
    A(f"v_xor_b32 v{t[4]}, v{t[4]}, v{t[0]}\nv_lshlrev_b32 v{t[4]}, 4, v{t[4]}\nv_lshl_add_u32 v{t[4]}, v{t[0]}, 8, v{t[4]}\nv_add_u32 v{vKA}, {LDS_K}, v{t[4]}")
    for j in range(1, 4): A(f"v_xor_b32 v{vKA + j}, {j << 6}, v{vKA}")
    A(f"v_lshl_add_u32 v{t[4]}, v{t[5]}, 2, v{t[2]}\nv_lshlrev_b32 v{t[4]}, 5, v{t[4]}\nv_lshl_add_u32 v{t[4]}, v{t[3]}, 3, v{t[4]}")
    A(f"v_lshl_add_u32 v{t[6]}, v{t[1]}, 2, v{t[2]}\nv_lshl_add_u32 v{t[4]}, v{t[6]}, 8, v{t[4]}\nv_add_u32 v{vVA}, {LDS_V}, v{t[4]}")
    for db in range(1, 8): A(f"v_xor_b32 v{vVA + db}, {db << 5}, v{vVA}")
    for i in range(4):
        A(f"v_xor_b32 v{t[4]}, v{t[0]}, v{t[1]}\nv_xor_b32 v{t[4]}, {4 * i}, v{t[4]}\nv_lshlrev_b32 v{t[4]}, 4, v{t[4]}\nv_lshl_add_u32 v{vKD + i}, v{t[1]}, 8, v{t[4]}")
    for i in range(2):
        A(f"v_lshlrev_b32 v{t[4]}, 1, v{t[1]}\nv_xor_b32 v{t[4]}, v{t[4]}, v{t[0]}\nv_xor_b32 v{t[4]}, {8 * i}, v{t[4]}\nv_lshlrev_b32 v{t[4]}, 4, v{t[4]}\nv_lshl_add_u32 v{vVD + i}, v{t[1]}, 8, v{t[4]}")
    A(f"s_lshl_b32 s{sT1}, s{sW}, 12\ns_add_u32 s{sKM0}, s{sT1}, {LDS_K}\ns_add_u32 s{sVM0}, s{sT1}, {LDS_V}")
    A(f"v_mov_b32 v{t[4]}, 0x3f803f80")
    for i in range(4): A(f"v_accvgpr_write_b32 a{aONE + i}, v{t[4]}")
    for i in range(4): A(f"v_mov_b32 v{vMT + i}, 0xff800000")
    A(f"s_mov_b32 s{sREDO}, 0")
    stamp(A, 0)
    m, q = 192, 196
    for jj in range(16):
        A(f"s_waitcnt vmcnt({35 - jj})")
        A(mfma(vr(m), ar(aONE), vr(vX + 4 * jj), vr(m) if jj else "0"))
    A(f"v_mul_f32 v{m}, {f32(1 / 512)}, v{m}\nv_cvt_pk_bf16_f32 v{m}, v{m}, v{m}\nv_lshlrev_b32 v{m}, 16, v{m}")
    A(f"s_lshl_b32 s{sT1}, s{sW}, 10\nv_add_u32 v{t[4]}, s{sT1}, v{vLANE16}")
    for jj in range(16):
        for r in range(4):
            x = vX + 4 * jj + r; a, b = 200 + 2 * (r % 2), 201 + 2 * (r % 2)
            A(f"v_lshlrev_b32 v{a}, 16, v{x}\nv_and_b32 v{b}, 0xffff0000, v{x}\nv_sub_f32 v{a}, v{a}, v{m}\nv_sub_f32 v{b}, v{b}, v{m}\nv_cvt_pk_bf16_f32 v{x}, v{a}, v{b}")
        A(f"ds_write_b128 v{t[4]}, {vr(vX + 4 * jj)} offset:{LDS_A + jj * 4096}")
        if jj: A(mfma(vr(q), vr(vX + 4 * jj - 4), vr(vX + 4 * jj - 4), vr(q) if jj > 1 else "0"))
    A(mfma(vr(q), vr(vX + 60), vr(vX + 60), vr(q)))
    for r in range(1, 4):
        A(f"v_cmp_eq_u32 vcc, {r}, v{t[3]}\nv_cndmask_b32 v{q}, v{q}, v{q + r}, vcc")
    rb16 = lambda x: f"v_cvt_pk_bf16_f32 v{x}, v{x}, v{x}\nv_lshlrev_b32 v{x}, 16, v{x}"
    A(f"v_mul_f32 v{q}, {f32(1 / 512)}, v{q}"); A(rb16(q))
    A(f"v_add_f32 v{q}, {f32(1e-5)}, v{q}"); A(rb16(q))
    A(f"v_sqrt_f32 v{q}, v{q}"); A(rb16(q))
    A(f"s_lshl_b32 s{sT1}, s{sW}, 6\ns_add_u32 s{sT1}, s{sT1}, {LDS_R + 5 * 4096}\nv_lshl_add_u32 v{t[4]}, v{t[0]}, 2, s{sT1}")
    A(f"v_add_u32 v{t[6]}, {2 * RING}, v{t[4]}")
    A(f"v_cmp_eq_u32 vcc, v{t[2]}, v{t[1]}\ns_and_saveexec_b64 s[{sC0}:{sC1}], vcc")
    A(f"ds_write_b32 v{t[4]}, v{q}\nds_write_b32 v{t[4]}, v{q} offset:{RING}\nds_write_b32 v{t[6]}, v{q}\nds_write_b32 v{t[6]}, v{q} offset:{RING}")
    A(f"s_mov_b64 exec, s[{sC0}:{sC1}]")
    A("s_waitcnt lgkmcnt(0)\ns_barrier")
    A(f"s_add_u32 s{sT1}, s{sRING}, {5 * 4096}\nv_lshl_add_u32 v{t[4]}, v{t[0]}, 2, s{sT1}")
    for tb in range(4): A(f"ds_read_b32 v{vSD + tb}, v{t[4]} offset:{64 * tb}")
    A("s_waitcnt lgkmcnt(0)")
    for tb in range(4): A(f"v_rcp_f32 v{vRS + tb}, v{vSD + tb}")
    stamp(A, 1)
    gemm(A, 'gu', US)
    stamp(A, 2)
    for tb in range(4): A(f"v_mul_f32 v{t[4 + tb]}, {f32(-math.log2(math.e))}, v{vRS + tb}")
    for nb in range(4):
        for tb in range(4):
            gq, uq = vX + (nb * 4 + tb) * 4, vX + ((nb + 4) * 4 + tb) * 4
            for r in range(4): A(f"v_mul_f32 v{gq + r}, v{gq + r}, v{t[4 + tb]}")
            for r in range(4): A(f"v_exp_f32 v{gq + r}, v{gq + r}")
            for r in range(4): A(f"v_fma_f32 v{gq + r}, v{gq + r}, v{vSD + tb}, v{vSD + tb}")
            for r in range(4): A(f"v_rcp_f32 v{gq + r}, v{gq + r}")
            for r in range(4): A(f"v_mul_f32 v{gq + r}, v{gq + r}, v{uq + r}")
            h = vQ + ((nb // 2) * 4 + tb) * 4 + 2 * (nb % 2)
            A(f"v_cvt_pk_bf16_f32 v{h}, v{gq}, v{gq + 1}\nv_cvt_pk_bf16_f32 v{h + 1}, v{gq + 2}, v{gq + 3}")
    stamp(A, 3)
    gemm(A, 'q', US)
    stamp(A, 4)
    A("s_barrier")
    for a in range(2):
        A(f"s_lshl_b32 s{sT1}, s{sW}, 1\ns_add_u32 s{sT1}, s{sT1}, {a + 7}\ns_sub_u32 s{sT1}, s{sT1}, s{sROT7}")
        A(f"s_cmp_ge_u32 s{sT1}, 7\ns_cselect_b32 s{sT2}, 7, 0\ns_sub_u32 s{sT1}, s{sT1}, s{sT2}")
        if a: A(f"s_cmp_eq_u32 s{sW}, 3\ns_cselect_b32 s{sT1}, 7, s{sT1}")
        A(f"s_lshl_b32 s{sT1}, s{sT1}, 12\nv_add_u32 v{t[4]}, s{sT1}, v{vLANE16}")
        for tb in range(4): A(f"ds_write_b128 v{t[4]}, {vr(vQ + (a * 4 + tb) * 4)} offset:{LDS_A + tb * 1024}")
    c = math.log2(math.e) / math.sqrt(128.0)
    for tb in range(4): A(f"v_mul_f32 v{t[4 + tb]}, {f32(c)}, v{vRS + tb}")
    for qb in (2, 3, 0, 1):
        for j in range(4):
            lo, hi, d = vX + (2 * j * 4 + qb) * 4, vX + ((2 * j + 1) * 4 + qb) * 4, vQ + (qb * 4 + j) * 4
            for r in range(4): A(f"v_mul_f32 v{lo + r}, v{lo + r}, v{t[4 + qb]}\nv_mul_f32 v{hi + r}, v{hi + r}, v{t[4 + qb]}")
            A(f"v_cvt_pk_bf16_f32 v{d}, v{lo}, v{lo + 1}\nv_cvt_pk_bf16_f32 v{d + 1}, v{lo + 2}, v{lo + 3}")
            A(f"v_cvt_pk_bf16_f32 v{d + 2}, v{hi}, v{hi + 1}\nv_cvt_pk_bf16_f32 v{d + 3}, v{hi + 2}, v{hi + 3}")
            A(f"v_permlane16_swap_b32 v{d}, v{d + 2}\nv_permlane16_swap_b32 v{d + 1}, v{d + 3}")
    A("s_waitcnt lgkmcnt(0)\ns_barrier")
    stamp(A, 5)
    gemm(A, 'd', US)
    stamp(A, 6)
    store_partials(A, 0)
    A("L_att:")
    A("s_barrier")
    A(f"s_lshr_b32 s{sT1}, s{sW}, 1\ns_lshl_b32 s{sT2}, s{sRB}, 1\ns_add_u32 s{sT1}, s{sT1}, s{sT2}\ns_add_u32 s{sT1}, s{sT1}, 63\ns_and_b32 s{sT1}, s{sT1}, 63")
    A(f"s_lshl_b32 s{sT1}, s{sT1}, 13\ns_and_b32 s{sT2}, s{sW}, 1\ns_lshl_b32 s{sT2}, s{sT2}, 12\ns_add_u32 s{sKOFF}, s{sT1}, s{sT2}\ns_mov_b32 s{sVOFF}, s{sKOFF}")
    for which, slot in (('k', 2), ('k', 0), ('v', 0), ('k', 1), ('v', 1)):
        A(f"s_add_u32 m0, s{sKM0 if which == 'k' else sVM0}, {slot * 16384}\ns_nop 0")
        for i in range(4): A(kdma(i) if which == 'k' else vdma(i))
        A.extend(adv(sKOFF if which == 'k' else sVOFF))
    for i in range(128): A(f"v_accvgpr_write_b32 a{aO + i}, 0")
    for i in range(16): A(f"v_accvgpr_write_b32 a{aL + i}, 0\nv_mov_b32 v{vP[1] + i}, 0")
    A("s_waitcnt vmcnt(16)\ns_barrier")
    for n in range(8): A.extend(kread(ar(aPRE + 4 * n), n % 4, 2 * 16384 + 8192 + (n // 4) * 4096))
    for n in range(8):
        A(f"s_waitcnt lgkmcnt({7 - n})")
        for qb in range(4):
            d = vr(vS[0] + ((n // 4) * 4 + qb) * 4)
            A(mfma(d, ar(aPRE + 4 * n), vr(vQ + (qb * 4 + n % 4) * 4), d if n % 4 else "0"))
    for qb in range(4):
        x, y, mm = vS[0] + qb * 4, vS[0] + (4 + qb) * 4, vE + qb
        A(f"v_max3_f32 v{mm}, v{x}, v{x+1}, v{vMT + qb}\nv_max3_f32 v{mm}, v{x+2}, v{x+3}, v{mm}\nv_max3_f32 v{mm}, v{y}, v{y+1}, v{mm}\nv_max3_f32 v{mm}, v{y+2}, v{y+3}, v{mm}")
        xlane_max(A, mm, vE + 4)
        for r in range(4): A(f"v_sub_f32 v{vNM + 4 * qb + r}, 0, v{mm}")
        for r in range(4): A(f"v_sub_f32 v{x + r}, v{x + r}, v{mm}\nv_sub_f32 v{y + r}, v{y + r}, v{mm}")
    A("s_waitcnt vmcnt(8)\ns_barrier")
    A.extend(group_reads(0, 0, 0)); A.extend(group_reads(1, 0, 0))
    A(f"s_mov_b32 s{sIT}, 0\ns_waitcnt lgkmcnt(1)")
    stamp(A, 7)
    A(".p2align 6\nL_loop:")
    iteration(A, 0); iteration(A, 1)
    iteration(A, 2, tail=(f"s_add_u32 s{sIT}, s{sIT}, 1", f"s_cmp_lt_u32 s{sIT}, 10", "s_cbranch_scc1 L_loop"))
    iteration(A, 0, kd=False, sync_vm=4)
    iteration(A, 1, kd=False, vd=False, sync_vm=0, last=True)
    off = 2 * 16384
    for n in range(8, 16):
        rd = vread(aF + 4 * ((n + 2) % 4), n + 2 - 8, off) if n + 2 < 16 else []
        for qb in range(4):
            A(pv_mfma(n, qb, vP[1]))
            if qb == 0: A.extend(rd)
            if qb == 3 and n < 15: A(f"s_waitcnt lgkmcnt({len(rd)})")
    for qb in range(4): A(sum_mfma(qb, vP[1]))
    stamp(A, 8)
    for qb in range(4): A(f"v_accvgpr_read_b32 v{vE + qb}, a{aL + 4 * qb}")
    A(f"s_mov_b32 s{sT1}, {f32(2.0 ** 30)}\nv_mov_b32 v{vE + 4}, 0")
    for qb in range(4):
        A(f"v_cmp_nlt_f32 vcc, v{vE + qb}, s{sT1}\nv_cndmask_b32 v{vE + 4}, v{vE + 4}, 1, vcc")
    A(f"s_lshl_b32 s{sT1}, s{sW}, 8\ns_add_u32 s{sT1}, s{sT1}, {LDS_FLAG}\nv_lshl_add_u32 v{vE + 5}, v0, 2, s{sT1}")
    A(f"ds_write_b32 v{vE + 5}, v{vE + 4}\ns_waitcnt lgkmcnt(0)\ns_barrier")
    A(f"v_lshlrev_b32 v{vE + 5}, 2, v0\nv_add_u32 v{vE + 5}, {LDS_FLAG}, v{vE + 5}")
    for w in range(4): A(f"ds_read_b32 v{vE + 6 + w}, v{vE + 5} offset:{256 * w}")
    for qb in range(4): A(f"v_rcp_f32 v{vE + qb}, v{vE + qb}")
    A(f"s_waitcnt lgkmcnt(0)\nv_or_b32 v{vE + 6}, v{vE + 6}, v{vE + 7}\nv_or3_b32 v{vE + 6}, v{vE + 6}, v{vE + 8}, v{vE + 9}")
    A(f"v_cmp_ne_u32 vcc, 0, v{vE + 6}\ns_cmp_eq_u32 s{sREDO}, 0\ns_cselect_b64 s[{sC0}:{sC1}], vcc, 0\ns_cmp_lg_u64 s[{sC0}:{sC1}], 0\ns_cbranch_scc1 L_slow")
    UO = UnitStream(['o'])
    UO.emit(A, 20)
    for a in range(4):
        A(f"s_lshl_b32 s{sT1}, s{sW}, 2\ns_add_u32 s{sT1}, s{sT1}, {a + 16}\ns_sub_u32 s{sT1}, s{sT1}, s{sROT}\ns_and_b32 s{sT1}, s{sT1}, 15\ns_lshl_b32 s{sT1}, s{sT1}, 12")
        A(f"v_add_u32 v{t[4]}, s{sT1}, v{vLANE16}")
        for qb in range(4):
            b = vX + ((a * 4 + qb) % 4) * 16
            for hh in range(2):
                for r in range(4): A(f"v_accvgpr_read_b32 v{b + 4 * hh + r}, a{aO + ((2 * a + hh) * 4 + qb) * 4 + r}")
            for r in range(8): A(f"v_mul_f32 v{b + r}, v{b + r}, v{vE + qb}")
            for r in range(4): A(f"v_cvt_pk_bf16_f32 v{b + 8 + r}, v{b + 2 * r}, v{b + 2 * r + 1}")
            A(f"ds_write_b128 v{t[4]}, {vr(b + 8)} offset:{LDS_A + qb * 1024}")
    A("s_waitcnt lgkmcnt(0)\ns_barrier")
    stamp(A, 9)
    gemm(A, 'o', UO)
    stamp(A, 10)
    store_partials(A, 16 << 20)
    if OPT['stamps']:
        A("s_waitcnt vmcnt(0)"); stamp(A, 11)
        A(f"s_load_dwordx2 s[4:5], s[0:1], 88\ns_waitcnt lgkmcnt(0)\ns_add_u32 s4, s4, {64 << 20}\ns_addc_u32 s5, s5, 0\ns_mov_b32 s6, 0x100000\ns_mov_b32 s7, 0x20000")
        A(f"s_lshl_b32 s{sT1}, s2, 2\ns_add_u32 s{sT1}, s{sT1}, s{sW}\ns_lshl_b32 s{sT1}, s{sT1}, 6\nv_mov_b32 v2, 0")
        for k in range(12):
            A(f"v_mov_b32 v3, s{64 + 2 * k}\nbuffer_store_dword v3, v2, s[4:7], s{sT1} offen offset:{4 * k}")
    A("L_end:\ns_endpgm")
    A("L_slow:")
    A(f"s_mov_b32 s{sREDO}, 1\ns_mov_b32 s{sIT}, 0\ns_lshl_b32 s{sKOFF}, s{sW}, 12\ns_mov_b32 m0, s{sKM0}")
    A("L_slow_loop:")
    A("s_barrier")
    for i in range(4): A(kdma(i))
    A(f"s_add_u32 s{sKOFF}, s{sKOFF}, 16384\ns_waitcnt vmcnt(0)\ns_barrier")
    for kb in range(4):
        for j in range(4): A.extend(kread(ar(aPRE + 4 * j), j, kb * 4096))
        A("s_waitcnt lgkmcnt(0)")
        for j in range(4):
            for qb in range(4):
                d = vr(vS[0] + qb * 4)
                A(mfma(d, ar(aPRE + 4 * j), vr(vQ + (qb * 4 + j) * 4), d if j else "0"))
        for qb in range(4):
            x = vS[0] + qb * 4
            A(f"v_max3_f32 v{vMT + qb}, v{x}, v{x+1}, v{vMT + qb}\nv_max3_f32 v{vMT + qb}, v{x+2}, v{x+3}, v{vMT + qb}")
    A(f"s_add_u32 s{sIT}, s{sIT}, 1\ns_cmp_lt_u32 s{sIT}, 32\ns_cbranch_scc1 L_slow_loop\ns_branch L_att")
    return A

def final_kernel():
    A = Asm()
    A("final_kernel:")
    A("s_cmp_ge_u32 s2, 256\ns_cbranch_scc1 L_fend")
    A("s_load_dwordx2 s[20:21], s[0:1], 0\ns_load_dwordx2 s[22:23], s[0:1], 72\ns_load_dwordx2 s[24:25], s[0:1], 88")
    A("v_lshrrev_b32 v1, 6, v0\nv_and_b32 v0, 63, v0\nv_readfirstlane_b32 s3, v1")
    A("s_lshr_b32 s16, s2, 3\ns_and_b32 s17, s2, 7")
    A("s_lshl_b32 s17, s17, 3\ns_lshl_b32 s3, s3, 1\ns_add_u32 s17, s17, s3")
    A("s_lshl_b32 s18, s16, 16\ns_lshl_b32 s19, s17, 10\ns_add_u32 s18, s18, s19")
    A("v_lshlrev_b32 v1, 4, v0\ns_waitcnt lgkmcnt(0)")
    A(f"s_add_u32 s4, s24, s18\ns_addc_u32 s5, s25, 0\ns_sub_u32 s6, {32 << 20}, s18\ns_mov_b32 s7, 0x20000")
    A(f"s_mov_b32 s8, s20\ns_mov_b32 s9, s21\ns_mov_b32 s10, {2 << 20}\ns_mov_b32 s11, 0x20000")
    A(f"s_mov_b32 s12, s22\ns_mov_b32 s13, s23\ns_mov_b32 s14, {2 << 20}\ns_mov_b32 s15, 0x20000")
    A("s_mov_b32 s26, 0")
    for k in range(16):
        for f in range(2): A(f"buffer_load_dwordx4 {vr(16 + (f * 16 + k) * 4)}, v1, s[4:7], s26 offen offset:{f * 1024}")
        if k < 15: A(f"s_add_u32 s26, s26, {2 << 20}")
    A("s_and_b32 s27, s17, 3\ns_lshl_b32 s27, s27, 4\ns_lshl_b32 s28, s16, 6\ns_add_u32 s27, s27, s28\ns_lshl_b32 s27, s27, 10")
    A("s_lshr_b32 s28, s17, 2\ns_lshl_b32 s28, s28, 6\ns_add_u32 s27, s27, s28")
    A("v_and_b32 v2, 15, v0\nv_lshrrev_b32 v3, 4, v0\nv_lshlrev_b32 v2, 10, v2\nv_lshl_add_u32 v2, v3, 3, v2\nv_add_u32 v2, s27, v2\nv_add_u32 v3, 16384, v2")
    for f in range(2):
        A(f"buffer_load_dwordx2 {vr(4 + 4 * f, 2)}, v{2 + f}, s[8:11], 0 offen\nbuffer_load_dwordx2 {vr(6 + 4 * f, 2)}, v{2 + f}, s[8:11], 0 offen offset:32")
    acc = lambda f, kind: 144 + (f * 2 + kind) * 8
    for k in range(16):
        for f in range(2):
            A(f"s_waitcnt vmcnt({35 - 2 * k - f})")
            src = 16 + (f * 16 + k) * 4; d = acc(f, k // 8)
            for r in range(4):
                if k % 8 == 0:
                    A(f"v_lshlrev_b32 v{d + 2 * r}, 16, v{src + r}\nv_and_b32 v{d + 2 * r + 1}, 0xffff0000, v{src + r}")
                else:
                    A(f"v_lshlrev_b32 v12, 16, v{src + r}\nv_and_b32 v13, 0xffff0000, v{src + r}\nv_add_f32 v{d + 2 * r}, v{d + 2 * r}, v12\nv_add_f32 v{d + 2 * r + 1}, v{d + 2 * r + 1}, v13")
    A("s_waitcnt vmcnt(0)")
    for f in range(2):
        d, s = acc(f, 0), acc(f, 1)
        for e in range(8): A(f"v_mul_f32 v{16 + e}, {f32(-math.log2(math.e))}, v{d + e}")
        for e in range(8): A(f"v_exp_f32 v{16 + e}, v{16 + e}")
        for e in range(8): A(f"v_add_f32 v{16 + e}, 1.0, v{16 + e}")
        for e in range(8): A(f"v_rcp_f32 v{16 + e}, v{16 + e}")
        for e in range(8): A(f"v_mul_f32 v{d + e}, v{d + e}, v{16 + e}")
        for r in range(4):
            x = 4 + 4 * f + r
            A(f"v_lshlrev_b32 v12, 16, v{x}\nv_and_b32 v13, 0xffff0000, v{x}")
            A(f"v_fma_f32 v12, v{s + 2 * r}, v{d + 2 * r}, v12\nv_fma_f32 v13, v{s + 2 * r + 1}, v{d + 2 * r + 1}, v13\nv_cvt_pk_bf16_f32 v{x}, v12, v13")
        A(f"buffer_store_dwordx2 {vr(4 + 4 * f, 2)}, v{2 + f}, s[12:15], 0 offen\nbuffer_store_dwordx2 {vr(6 + 4 * f, 2)}, v{2 + f}, s[12:15], 0 offen offset:32")
    A("L_fend:\ns_endpgm")
    return A

def descriptor(name, vg, acc, sg=102):
    return (f".amdhsa_kernel {name}\n  .amdhsa_next_free_vgpr {vg}\n  .amdhsa_next_free_sgpr {sg}\n  .amdhsa_accum_offset {acc}\n"
            f"  .amdhsa_group_segment_fixed_size 0\n  .amdhsa_kernarg_size 96\n  .amdhsa_user_sgpr_count 2\n"
            f"  .amdhsa_user_sgpr_kernarg_segment_ptr 1\n  .amdhsa_system_sgpr_workgroup_id_x 1\n"
            f"  .amdhsa_float_denorm_mode_32 3\n.end_amdhsa_kernel\n")

def build(verbose=False):
    head = [l for l in open(f"cdna_kernels/{NAME}.s.ref").read().split("\n") if l.startswith(";") and "@launch" not in l and "Override launch" not in l and "grid=ceil" not in l]
    out = "\n".join(head) + "\n"
    out += f"; @launch kernel=main_kernel grid=(256,1,1) block=(256,1,1) lds={LDS_TOTAL}\n"
    out += "; @launch kernel=final_kernel grid=(256,1,1) block=(256,1,1) lds=0\n"
    out += '.amdgcn_target "amdgcn-amd-amdhsa--gfx950"\n.text\n'
    for name, fn in (("main_kernel", main_kernel), ("final_kernel", final_kernel)):
        A = fn(); A.fix_hazards(verbose)
        out += f".globl {name}\n.p2align 8\n.type {name},@function\n" + A.text()
    out += '.section .rodata,"a"\n.p2align 6\n' + descriptor("main_kernel", 512, 256) + ".p2align 6\n" + descriptor("final_kernel", 176, 176, 40)
    return out

if __name__ == "__main__":
    dst = sys.argv[1] if len(sys.argv) > 1 else f"cdna_kernels/{NAME}.s"
    for a in sys.argv[2:]:
        k, v = a.split("="); OPT[k] = int(v)
    open(dst, "w").write(build(verbose=True))
```

```python
import math, struct, sys
from asmlib import Asm, Ins

NAME = "recurrent_scan__gqa_block_cached__glu_gated_glu__prompt"
OPT = dict(stamps=0, thr=30, room1=1, wotouch=1, paced=12, kvearly=0, kvst=0, pk=1, wo3=1, fused=1, limit=4096, dropflag=-1, early=1)

def f32(x): return "0x%08x" % struct.unpack("<I", struct.pack("<f", x))[0]
def vr(b, n=4): return f"v[{b}:{b+n-1}]"
def ar(b, n=4): return f"a[{b}:{b+n-1}]"
def mfma(d, a, b, c): return f"v_mfma_f32_16x16x32_bf16 {d}, {a}, {b}, {c}"
LOG2E = math.log2(math.e)
CQ = LOG2E / math.sqrt(128.0)

LDS_A = 0
LDS_R = 65536
RING = 24576
LDS_K, LDS_V = LDS_R, LDS_R + 49152
LDS_K0, LDS_K1, LDS_V0 = 32768, 40960, 57344
LDS_O = LDS_R
LDS_FLAG = LDS_R + 65536
LDS_TOTAL = 163840

S_X, S_K, S_V, S_WQ, S_WO, S_WG, S_WU, S_WD, S_WS, S_KV = 4, 8, 12, 16, 20, 24, 28, 32, 36, 88
sG, sRB, sW, sROT, sROT7, sRING = 40, 41, 42, 43, 44, 45
sOFF = {'gu': 64, 'q': 66, 'd': 68, 'o': 46}
sWR, sOB = 48, 70
sTMP, sT1, sT2, sT3 = 50, 51, 52, 53
sKOFF, sVOFF, sKM0, sVM0, sIT, sREDO = 54, 55, 56, 57, 58, 59
sC0, sC1, sCQ, sODD = 60, 61, 62, 63
sM0A, sM0B, sKV0, sKVM = 92, 93, 94, 95
sST = 3
S_DS, S_DP = S_WG, S_WU
sDOFF, sTRIG, sEARLY = 64, 65, 66
sCAND, sTOK, sJ, sREADY, sLOADED, sRAW, sAB, sCNT, sGONE, sTODO = 74, 75, 76, 77, 78, 79, 80, 81, 49, 47
def srd(b): return f"s[{b}:{b+3}]"

vLANE16 = 1
vT = list(range(2, 10))
vANAT, vAACC = 10, 14
vVO = {'gu': 18, 'q': 22, 'd': 26, 'o': 26}
vD0 = 30
vKA, vVA, vKD, vVD = 34, 38, 46, 50
vHA, vOB, vOA, vMT = 52, 54, 56, 60
vDA = 18
vQ, vX = 64, 128
vS = [128, 160]; vP = [192, 208]; vNM = 224; vE = 240
aF, aB, aONE, aL, aO = 0, 16, 108, 112, 128
def aPre(n): return 4 * n if n < 4 else 80 + 4 * (n - 4)
aB2 = 80
aD = 16

GEMM = {
    'gu': dict(nk=16, stride=3584, nat=True),
    'q':  dict(nk=16, stride=8192, nat=True),
    'd':  dict(nk=7, stride=1024, nat=False),
    'o':  dict(nk=16, stride=1024, nat=False),
}

class Counter:
    def __init__(self): self.n = 0; self.tag = {}
    def issue(self, tag=None):
        self.n += 1
        if tag is not None: self.tag[tag] = self.n
    def need(self, tag): return self.n - self.tag[tag]

class Ctx:
    def __init__(self):
        self.A = Asm(); self.vm = Counter(); self.lg = Counter()
    def emit(self, text, tag=None):
        for line in text.split('\n'):
            self.A(line)
            mn = line.strip().split()[0]
            if mn.startswith('buffer_'): self.vm.issue(tag)
            elif mn.startswith('ds_'): self.lg.issue(tag)

class UnitStream:
    def __init__(self, units, m0, after=()):
        self.units = units; self.m0 = m0; self.pos = 0; self.after = list(after)
    def remaining(self): return len(self.units) * 4 - self.pos
    def next(self):
        u, i = divmod(self.pos, 4); self.pos += 1
        U = self.units[u]
        d = f"buffer_load_dwordx4 v{vVO[U['g']] + i}, {srd(U['srd'])}, s{U['so']} offen offset:{i * 1024} lds"
        return ([self.m0(u)] if i == 0 else []), d, (U['lazy'] if i == 0 else []), ('u', id(self), u)
    def emit(self, C, count):
        assert count % 4 == 0 and self.pos % 4 == 0
        for _ in range(count // 4):
            L = [self.next() for _ in range(4)]
            C.emit(L[0][0][0] + "\ns_nop 0")
            for pre, d, post, tag in L: C.emit(d, tag)
            for p in L[0][2]: C.emit(p)

def front_units():
    out = []
    seq = [(n, s, h) for n in ('gu', 'q', 'd') for s in range(GEMM[n]['nk']) for h in range(2)]
    for k, (n, s, h) in enumerate(seq):
        G = GEMM[n]; step = 32 * G['stride']
        cur, nxt = sOFF[n] + s % 2, sOFF[n] + (s + 1) % 2
        lazy = []
        if h == 0 and n != 'gu': lazy = [f"s_add_u32 s{sTMP}, s{cur}, 128"]
        if h == 1 and s < G['nk'] - 1:
            lazy = [f"s_add_u32 s{nxt}, s{cur}, {step}", f"s_sub_u32 s{sWR}, s{nxt}, {step * G['nk']}", f"s_min_u32 s{nxt}, s{nxt}, s{sWR}"]
        out.append(dict(g=n, srd={'gu': (S_WG, S_WU)[h], 'q': S_WQ, 'd': S_WD}[n], so=sTMP if (h and n != 'gu') else cur, lazy=lazy))
    return out

O_ORDER = [(s, h) for s in range(12) for h in range(2)] + [(s, 0) for s in range(12, 16)] + [(s, 1) for s in range(12, 16)]
def o_off(k):
    s, h = O_ORDER[k]
    return f"s_add_u32 s{sOFF['o'] + k % 2}, s{sOB + s % 4}, {(s // 4) * 32768 + h * 128}"
def o_units():
    return [dict(g='o', srd=S_WO, so=sOFF['o'] + k % 2, lazy=[o_off(k + 1)] if k < 31 else []) for k in range(32)]

class Fill:
    W = {'p': 1, 't': 2, 'w': 2, 'v': 2, 's': 0, 'G': 0}
    def __init__(self, lo=0, hi=0): self.q = []; self.lo = lo; self.hi = hi; self.done = 0; self.total = 0
    def add(self, kind, text, tag=None):
        for line in (text.split('\n') if kind != 'G' else [text]):
            self.q.append((kind, line, tag)); self.total += self.W[kind]
    def pick(self, n, room, mem_ok, here, window=40):
        while self.q and self.q[0][0] == 'G' and n >= self.q[0][1]: self.q.pop(0)
        rd, wr, best = set(), set(), None
        for j, (kind, text, tag) in enumerate(self.q[:window]):
            if kind == 'G': break
            I = Ins(text)
            free = not (I.rd & wr or I.wr & (rd | wr) or I.rd & here)
            if free and self.W[kind] <= room and (kind not in 'wv' or mem_ok):
                if self.W[kind] != 1: return j
                if best is None: best = j
            rd |= I.rd; wr |= I.wr
        return best

def run_gemm(C, groups, US, fills=(), bars=None, marks=None, bursts=None, after_tag=None):
    ng = len(groups); bars = bars or {}
    def utag(u): return ('u', id(US), u)
    def tr(n): return groups[n]['tr'](aF + 4 * (n % 4))
    g0 = groups[0]
    C.emit(f"s_waitcnt vmcnt({C.vm.need(utag(g0['u']))})")
    for tb in range(4): C.emit(g0['bread'](g0['b'], tb), ('b', g0['b']))
    for n in range(2):
        for x in tr(n): C.emit(x, ('a', n))
    C.emit(f"s_waitcnt lgkmcnt({C.lg.need(('a', 0))})")
    lazy = []
    for n, g in enumerate(groups):
        if marks and n in marks: stamp(C, marks[n])
        if after_tag and n in after_tag: assert C.vm.tag[after_tag[n]] <= C.vm.tag[utag(groups[n + 1]['u'])]
        gaps = [[], [], [], []]
        if n + 2 < ng: gaps[0] += [(x, ('a', n + 2)) for x in tr(n + 2)]
        item = None
        if US.remaining() > 0:
            if US.pos // 4 <= g['u'] + 5: item = US.next()
        elif US.after: item = US.after.pop(0)
        post = []
        if item:
            pre, d, post, tag = item
            gaps[1] = [(d, tag)]
            if pre:
                due = lazy + pre; lazy = []
                for x in due[:-1]: C.emit(x)
                gaps[0] = [(due[-1], None)] + gaps[0]
        if lazy and not (gaps[0] and gaps[0][0][0].startswith('s_')): gaps[0] = [(lazy.pop(0), None)] + gaps[0]
        lazy += post
        room = [0, OPT['room1'] if item else 2, 2 - len(g['breads']), 2]
        burst = bursts.get(n) if bursts else None
        if n in bars:
            assert not g['breads']
            gaps[2] = [("s_barrier", None)]; room[2] = 0
        elif item and US.remaining() > 0 and not g['breads'] and not burst and US.pos < (g['u'] + 5) * 4 + n % 4 + 1:
            pre, d, post, tag = US.next()
            gaps[2] = [(x, None) for x in (lazy + pre + ["s_nop 0"] if pre else [])] + [(d, tag)]
            lazy = (lazy if not pre else []) + post; room[2] = 0
        elif burst:
            assert not g['breads'] and not lazy and US.pos % 4 == 0
            for x, _ in burst:
                for F in fills: assert not any(Ins(x).rd & Ins(y).wr for k_, y, _t in F.q if k_ != 'G' and F.lo <= n), ("burst before its data", n, x)
            gaps[2] = list(burst); room[2] = 0
        else:
            if lazy: gaps[2].append((lazy.pop(0), None))
            for b in g['breads']: gaps[2].append((g['bread'](*b), ('b', b[0])))
        for F in fills:
            if not (F.lo <= n): continue
            quota = F.total * min(n + 1 - F.lo, F.hi - F.lo) / (F.hi - F.lo)
            for k in (1, 2, 3):
                here = set()
                while F.q and F.done < quota:
                    empty = not any(not x.startswith('s_') for x, _ in gaps[k])
                    j = F.pick(n, room[k], empty and k != 3, here)
                    if j is None: break
                    kind, text, tag = F.q.pop(j)
                    here |= Ins(text).wr
                    gaps[k].append((text, tag)); room[k] -= F.W[kind]; F.done += F.W[kind]
            if n + 1 == F.hi and F.q and n + 1 < ng:
                print(f"; filler overflow at group {n}: {len(F.q)} left")
                gaps[3] += [(x, tag) for k_, x, tag in F.q if k_ != 'G']; F.q = []
        for tb in range(4):
            C.emit(mfma(g['acc'][tb], ar(aF + 4 * (n % 4)), ar(aB + 16 * g['bbuf'] + 4 * tb), "0" if g['first'] else g['acc'][tb]))
            late = []
            if tb == 3 and n + 1 < ng:
                tags = [('a', n + 1)]
                if groups[n + 1]['b'] != g['b']: tags.append(('b', groups[n + 1]['b']))
                w = f"lgkmcnt({min(C.lg.need(x) for x in tags)})"
                if n + 3 < ng and groups[n + 3]['u'] != groups[n + 2]['u']:
                    w = f"vmcnt({C.vm.need(utag(groups[n + 3]['u']))}) " + w
                C.emit("s_waitcnt " + w)
            if tb == 1 and n in bars and bars[n] is not None:
                C.emit(f"s_waitcnt lgkmcnt({C.lg.need(bars[n])})")
            for x, tag in gaps[tb]: C.emit(x, tag)
    for x in lazy: C.emit(x)

def front_groups(name, u0, accf, nxt):
    G = GEMM[name]; nk = G['nk']
    addr, uoff = (vANAT, 512) if G['nat'] else (vAACC, 2048)
    par = (u0 // 2) % 2
    def bread(bs, tb):
        return f"ds_read_b128 {ar(aB + 16 * bs[2] + 4 * tb)}, v{vLANE16} offset:{LDS_A + (bs[1] * 4 + tb) * 1024}"
    groups = []
    for s in range(nk):
        for nb in range(8):
            u = u0 + 2 * s + nb // 4
            def tr(b, u=u, nb=nb):
                o = (u % 6) * 4096
                return [f"ds_read_b64_tr_b16 {ar(b, 2)}, v{addr + nb % 4} offset:{o}", f"ds_read_b64_tr_b16 {ar(b + 2, 2)}, v{addr + nb % 4} offset:{o + uoff}"]
            nb_key = (name, s + 1, (par + s + 1) % 2) if s + 1 < nk else ((nxt, 0, (par + s + 1) % 2) if nxt else None)
            groups.append(dict(u=u, b=(name, s, (par + s) % 2), bbuf=(par + s) % 2, acc=[accf(nb, tb) for tb in range(4)], first=s == 0,
                               breads=[(nb_key, nb - 1)] if (1 <= nb <= 4 and nb_key) else [], tr=tr, bread=bread))
    return groups

def o_groups():
    def bread(bs, tb): return f"ds_read_b128 {ar(aB2 + 16 * bs[2] + 4 * tb)}, v{vOB} offset:{(bs[1] * 4 + tb) * 1024}"
    steps = [(s, (0, 1)) for s in range(12)] + [(s, (0,)) for s in range(12, 16)] + [(s, (1,)) for s in range(12, 16)]
    groups = []; u = 0
    for k, (s, hs) in enumerate(steps):
        nxt = (k + 1, steps[k + 1][0], (k + 1) % 2) if k + 1 < len(steps) else None
        for idx, (h, b4) in enumerate((h, b4) for h in hs for b4 in range(4)):
            uu = u + idx // 4
            def tr(b, uu=uu, b4=b4):
                q = uu % 6
                addr, o = (vAACC, q * 4096) if q < 4 else (vANAT, (5 - q) * 16384)
                return [f"ds_read_b64_tr_b16 {ar(b, 2)}, v{addr + b4} offset:{o}", f"ds_read_b64_tr_b16 {ar(b + 2, 2)}, v{addr + b4} offset:{o + 2048}"]
            j = idx - 1 if len(hs) == 2 else idx
            groups.append(dict(u=uu, b=(k, s, k % 2), bbuf=k % 2 + (aB2 - aB) // 16, acc=[xacc(4 * h + b4, tb) for tb in range(4)], first=s == 0,
                               breads=[(nxt, j)] if (nxt and 0 <= j < 4) else [], tr=tr, bread=bread))
        u += len(hs)
    return groups

def xacc(nb, tb): return vr(vX + (nb * 4 + tb) * 4)

def pack_store(F, a, base_ops):
    for x in base_ops: F.add('s', x)
    for tb in range(4):
        lo = vX + ((2 * a) * 4 + tb) * 4; hi = lo + 16
        F.add('p', f"v_cvt_pk_bf16_f32 v{lo}, v{lo}, v{lo+1}\nv_cvt_pk_bf16_f32 v{lo+1}, v{lo+2}, v{lo+3}\n"
                   f"v_cvt_pk_bf16_f32 v{lo+2}, v{hi}, v{hi+1}\nv_cvt_pk_bf16_f32 v{lo+3}, v{hi+2}, v{hi+3}")
        F.add('v', f"buffer_store_dwordx4 {vr(lo)}, v{vLANE16}, {srd(S_WS)}, s{sST} offen offset:{tb * 1024}" + (" sc1" if OPT['fused'] else ""))

def flush(C, F):
    for kind, text, tag in F.q: C.emit(text, tag)
    F.q = []

def kread(buf, j, off): return [f"ds_read_b128 {buf}, v{vKA + j} offset:{off}"]
def vread(b, db, off):
    return [f"ds_read_b64_tr_b16 {ar(b, 2)}, v{vVA + db} offset:{off}", f"ds_read_b64_tr_b16 {ar(b + 2, 2)}, v{vVA + db} offset:{off + 4096}"]
def kdma(i): return f"buffer_load_dwordx4 v{vKD + i}, {srd(S_K)}, s{sKOFF} offen offset:{i * 1024} lds"
def vdma(i): return f"buffer_load_dwordx4 v{vVD + i % 2}, {srd(S_V)}, s{sVOFF} offen offset:{i * 1024} lds"
def adv(s): return [f"s_add_u32 s{s}, s{s}, 16384", f"s_and_b32 s{s}, s{s}, 0x7ffff"]
def tile_dma(which, slot):
    if which == 'k': return [([f"s_add_u32 m0, s{sKM0}, {slot * 16384}"] if i == 0 else [], kdma(i), adv(sKOFF) if i == 3 else [], None) for i in range(4)]
    return [([f"s_add_u32 m0, s{sVM0}, {slot * 16384}"] if i == 0 else [], vdma(i), adv(sVOFF) if i == 3 else [], None) for i in range(4)]

def group_reads(n, koff, voff):
    b = aF + 4 * (n % 4)
    if n < 8: return kread(ar(b), n % 4, koff + (n // 4) * 4096)
    return vread(b, n - 8, voff)
def qk_mfma(n, qb, S, A=None, zero=False):
    kb, j = n // 4, n % 4
    d = vr(S + (kb * 4 + qb) * 4)
    return mfma(d, A or ar(aF + 4 * (n % 4)), vr(vQ + (qb * 4 + j) * 4), d if j else ("0" if zero else vr(vNM + 4 * qb)))
def pv_mfma(n, qb, P, zero=False):
    d = ar(aO + ((n - 8) * 4 + qb) * 4)
    return mfma(d, ar(aF + 4 * (n % 4)), vr(P + 4 * qb), "0" if zero else d)
def sum_mfma(qb, P, zero=False):
    d = ar(aL + 4 * qb)
    return mfma(d, ar(aONE), vr(P + 4 * qb), "0" if zero else d)

def step(C, par, koff, voff, look, dmas, sync=None, tail=(), qk=True, pv=True, zero=False, extra=None, h6=()):
    Sc, Sn, Pc, Pp = vS[par], vS[1 - par], vP[par], vP[1 - par]
    extra = extra or {}
    def ex(e):
        x = Sc + (((e // 4) % 2) * 4 + e // 8) * 4 + e % 4
        return f"v_exp_f32 v{x}, v{x}"
    def cv(k):
        x = Sc + (((k // 2) % 2) * 4 + k // 4) * 4 + 2 * (k % 2)
        return f"v_cvt_pk_bf16_f32 v{Pc + k}, v{x}, v{x + 1}"
    ns = [n for n in range(16) if (qk if n < 8 else pv)]
    per = 32 // len(ns)
    dmas = list(dmas); scal = []
    e = 0; c = 0
    for idx, n in enumerate(ns):
        lastg = idx == len(ns) - 1
        rd = group_reads(ns[idx + 2], koff, voff) if idx + 2 < len(ns) else []
        cs = []
        while c < e // 2: cs.append(cv(c)); c += 1
        es = [ex(e + k) for k in range(per)]; e += per
        g = [[], [], [], []]; tags = [None] * 4
        w = None
        if not lastg:
            w = f"s_waitcnt lgkmcnt({len(rd)})"
            if idx == len(ns) - 2 and sync is not None: w = 'SYNC'
        xs = list(extra.get(n, []))
        if per == 4:
            if lastg:
                g = [(["s_barrier"] if sync is not None else []), look[0] + [es[0]], [es[1]] + cs, [es[2], es[3]] + xs]
            else:
                g = [rd + cs[:1], [es[0]] + cs[1:], [es[1]] + xs, [w, es[2], es[3]]]
                if dmas:
                    pre, d, post, tag = dmas.pop(0)
                    g[0] = scal + pre + g[0]; scal = list(post); g[1] = [d]; tags[1] = tag; g[2] = [es[0]] + cs[1:] + [es[1]] + xs
        elif lastg:
            g[0] = ["s_barrier"] if sync is not None else []
            g[1] = look[0] + (cs if len(look[0]) == 1 else []); g[2] = [es[0]]; g[3] = [es[1]]
            if len(look[0]) == 2: c -= len(cs)
            g[0] += xs if sync is None else []; g[3] += xs if sync is not None else []
        elif dmas:
            pre, d, post, tag = dmas.pop(0)
            one = len(rd) < 2
            g[0] = scal + pre + rd + (cs if one else []); scal = list(post)
            g[1] = [d] + ([] if one else cs); tags[1] = tag; g[2] = [es[0]] + xs; g[3] = [w, es[1]]
        elif len(rd) == 2:
            g = [rd, scal[:1] + [es[0]], cs + xs, [w, es[1]]]; scal = scal[1:]
        else:
            g = [(list(h6) if n == 14 else []) + rd + cs, scal[:1] + [es[0]], xs, [w, es[1]]]; scal = scal[1:]
        for qb in range(4):
            C.emit(qk_mfma(n, qb, Sn) if n < 8 else pv_mfma(n, qb, Pp, zero))
            for x in g[qb]:
                if x == 'SYNC': x = f"s_waitcnt vmcnt({sync() if callable(sync) else sync}) lgkmcnt(0)"
                C.emit(x, tags[qb] if x.startswith('buffer_') else None)
    assert not dmas
    cs = [cv(k) for k in range(c, 16)]
    wl = f"s_waitcnt lgkmcnt({len(look[1])})"
    if not pv:
        for x in scal + look[1] + cs + [wl]: C.emit(x)
        return
    one = len(look[1]) == 1
    g = [look[1] + (cs[:1] if one else []), cs[1:] if one else cs, scal, [wl]]
    if tail: g[1] = [tail[0]] + g[1]; g[2] = g[2] + [tail[1]]; g[3] = g[3] + [tail[2]]
    for qb in range(4):
        C.emit(sum_mfma(qb, Pp, zero))
        for x in g[qb]: C.emit(x)

def iteration(C, k, tail=(), hook=()):
    slot = (k + 1) % 3
    ks, nx, ds = slot * 16384, ((slot + 1) % 3) * 16384, (slot + 2) % 3
    def st(j): return [([], f"buffer_store_dwordx4 {vr(vE)}, v{vLANE16}, {srd(S_DS)}, s{sDOFF} offen offset:{(j - 1) * 1024}" + (" sc1" if OPT['fused'] else ""),
                        [f"s_add_u32 s{sDOFF}, s{sDOFF}, 4096"] if j == 4 else [], None)] if 1 <= j <= 4 else []
    def rd(j): return [f"ds_read_b128 {vr(vE)}, v{vDA} offset:{j * 1024}"] if j <= 3 else ([f"v_add_u32 v{vDA}, 16384, v{vDA}"] if j == 4 else list(hook))
    step(C, 0, ks, ks, [group_reads(0, ks + 8192, 0), group_reads(1, ks + 8192, 0)], tile_dma('k', ds) + st(2 * k), h6=rd(2 * k))
    step(C, 1, ks + 8192, ks + 8192, [group_reads(0, nx, 0), group_reads(1, nx, 0)], tile_dma('v', ds) + st(2 * k + 1),
         sync=(9, 11, 10)[k], tail=tail, h6=rd(2 * k + 1))

def xlane(C, op, m, t):
    C.emit(f"v_mov_b32 v{t}, v{m}\nv_permlane32_swap_b32 v{m}, v{t}\n{op} v{m}, v{m}, v{t}")
    C.emit(f"v_mov_b32 v{t}, v{m}\nv_permlane16_swap_b32 v{m}, v{t}\n{op} v{m}, v{m}, v{t}")

def stamp(C, k):
    if OPT['stamps'] and k in (11, 12, 13): C.A(f"s_memrealtime s[100:101]\ns_waitcnt lgkmcnt(0)\nv_writelane_b32 v55, s100, {k + 8}")
    if OPT['stamps']: C.A(f"s_memtime s[100:101]\ns_waitcnt lgkmcnt(0)\nv_writelane_b32 v55, s100, {k}")

def att_offsets(C):
    E = C.emit
    E(f"s_and_b32 s{sT2}, s{sRB}, {OPT['kvst']}\ns_lshl_b32 s{sT2}, s{sT2}, {14 + OPT.get('kvsh', 0)}\ns_and_b32 s{sT3}, s{sW}, 1\ns_lshl_b32 s{sT3}, s{sT3}, 12\ns_add_u32 s{sKV0}, s{sT2}, s{sT3}")
    E(f"s_lshr_b32 s{sT1}, s{sW}, 1\ns_add_u32 s{sT1}, s{sT1}, 1\ns_lshl_b32 s{sT1}, s{sT1}, 13\ns_add_u32 s{sKOFF}, s{sKV0}, s{sT1}")
    E(f"s_and_b32 s{sKOFF}, s{sKOFF}, 0x7ffff\ns_mov_b32 s{sVOFF}, s{sKOFF}")

def first_pieces():
    L = [([f"s_mov_b32 m0, s{sKVM}"] if i == 0 else [], f"buffer_load_dwordx4 v{vD0 + i}, {srd(S_KV)}, s{sKV0} offen offset:{i * 1024} lds", [], 'kv0') for i in range(4)]
    L += [([f"s_sub_u32 m0, s{sKM0}, {LDS_K - LDS_K1}"] if i == 0 else [], kdma(i), adv(sKOFF) if i == 3 else [], 'kv0') for i in range(4)]
    return L

def emit_dmas(C, L, nop=True):
    for pre, d, post, tag in L:
        for x in pre: C.emit(x)
        if pre and nop: C.emit("s_nop 0")
        C.emit(d, tag)
        for x in post: C.emit(x)

vG = 64

def silu(add, d, tmp):
    for e in range(8): add('p', f"v_mul_f32 v{tmp + e}, {f32(-LOG2E)}, v{d + e}")
    for e in range(8): add('t', f"v_exp_f32 v{tmp + e}, v{tmp + e}")
    for e in range(8): add('p', f"v_add_f32 v{tmp + e}, 1.0, v{tmp + e}")
    for e in range(8): add('t', f"v_rcp_f32 v{tmp + e}, v{tmp + e}")
    for e in range(8): add('p', f"v_mul_f32 v{d + e}, v{d + e}, v{tmp + e}")

def slice_srd(C, SP, sj):
    C.emit(f"s_lshl_b32 s{sT1}, s{sRB}, 2\ns_add_u32 s{sT1}, s{sT1}, s{sW}\ns_lshl_b32 s{sT1}, s{sT1}, 3\ns_add_u32 s{sT1}, s{sT1}, s{sj}\ns_lshl_b32 s{sT1}, s{sT1}, 11")
    C.emit(f"s_add_u32 s{SP}, s86, s{sT1}\ns_addc_u32 s{SP + 1}, s87, 0\ns_sub_u32 s{SP + 2}, {32 << 20}, s{sT1}\ns_mov_b32 s{SP + 3}, 0x20000")

def tail(C):
    E = C.emit; A = C.A; t = vT
    SF, SP, SO = S_K, S_V, S_WQ
    vTOK, vPA, vPL, vXA, vXD, vD, vSs, vU = t[0], t[2], t[3], t[4], 112, 192, 128, 96
    E(f"s_lshl_b32 s{sT1}, s{sRB}, 10\ns_add_u32 s{sT1}, s{sT1}, {32 << 20}\ns_add_u32 s{SF}, s86, s{sT1}\ns_addc_u32 s{SF + 1}, s87, 0\ns_mov_b32 s{SF + 2}, 1024\ns_mov_b32 s{SF + 3}, 0x20000")
    E(f"s_lshl_b32 s{sT1}, s{sRB}, 16\ns_add_u32 s{SO}, s82, s{sT1}\ns_addc_u32 s{SO + 1}, s83, 0\ns_mov_b32 s{SO + 2}, 65536\ns_mov_b32 s{SO + 3}, 0x20000")
    E(f"s_lshl_b32 s{sT2}, s{sW}, 8\nv_and_b32 v{vPA}, 15, v0\nv_lshl_add_u32 v{vPA}, v{vPA}, 2, s{sT2}")
    poll = f"buffer_load_dword v{vPL}, v{vPA}, {srd(SF)}, 0 offen sc1"
    E(poll)
    E(f"v_readfirstlane_b32 s{sTOK}, v{vTOK}\ns_mov_b32 s{sCNT}, 0\ns_mov_b32 s{sGONE}, 0\ns_mov_b32 s{sJ}, s{sG}\ns_lshl_b32 s{sREADY}, 1, s{sG}\ns_mov_b32 s{sTODO}, -1")
    E(f"s_cmp_lg_u32 s{sTOK}, 0\ns_cbranch_scc1 L_havetok")
    E(f"v_mov_b32 v{t[4]}, s{sCAND}\nv_mov_b32 v{t[5]}, 0\nglobal_atomic_cmpswap v{t[6]}, v{t[5]}, v[{t[4]}:{t[5]}], s[84:85] sc0 sc1\ns_waitcnt vmcnt(0)")
    E(f"v_readfirstlane_b32 s{sTOK}, v{t[6]}\ns_nop 0\ns_cmp_eq_u32 s{sTOK}, 0\ns_cselect_b32 s{sTOK}, s{sCAND}, s{sTOK}")
    A("L_havetok:")
    if OPT['dropflag'] >= 0: E(f"s_cmp_eq_u32 s{sG}, {OPT['dropflag']}\ns_cbranch_scc0 L_sendflag\ns_mov_b32 s{sT1}, 0\nL_late:\ns_sleep 127\ns_add_u32 s{sT1}, s{sT1}, 1\ns_cmp_lt_u32 s{sT1}, 200\ns_cbranch_scc1 L_late\nL_sendflag:")
    E("s_waitcnt vmcnt(0)\ns_barrier")
    stamp(C, 12)
    E(f"s_cmp_eq_u32 s{sW}, 0\ns_cbranch_scc0 L_slice")
    E(f"s_lshl_b32 s{sT1}, s{sG}, 2\nv_lshlrev_b32 v{t[5]}, 8, v0\nv_mov_b32 v{t[6]}, s{sTOK}\nbuffer_store_dword v{t[6]}, v{t[5]}, {srd(SF)}, s{sT1} offen sc1")
    A("L_slice:")
    slice_srd(C, SP, sJ)
    E(f"s_and_b32 s{sT1}, s{sJ}, 1\ns_lshl_b32 s{sT1}, s{sT1}, 15\ns_lshr_b32 s{sT2}, s{sJ}, 1\ns_lshl_b32 s{sT2}, s{sT2}, 6\ns_add_u32 s{sT1}, s{sT1}, s{sT2}\ns_lshl_b32 s{sT2}, s{sW}, 8\ns_add_u32 s{sT1}, s{sT1}, s{sT2}")
    E(f"v_and_b32 v{vXA}, 15, v0\nv_lshrrev_b32 v{vXA + 1}, 4, v0\nv_lshlrev_b32 v{vXA}, 10, v{vXA}\nv_lshl_add_u32 v{vXA}, v{vXA + 1}, 3, v{vXA}\nv_add_u32 v{vXA}, s{sT1}, v{vXA}\nv_add_u32 v{vXA + 1}, 16384, v{vXA}")
    for f in range(2):
        for h in range(2): E(f"buffer_load_dwordx2 {vr(vXD + 4 * f + 2 * h, 2)}, v{vXA + f}, {srd(S_X)}, 0 offen offset:{32 * h}")
    E(f"s_mov_b32 s{sLOADED}, 0")
    A("L_look:")
    E(f"v_cmp_eq_u32 vcc, s{sTOK}, v{vPL}\ns_and_b32 s{sRAW}, vcc_lo, 0xff\ns_lshr_b32 s{sAB}, vcc_lo, 8\ns_and_b32 s{sAB}, s{sAB}, 0xff\ns_or_b32 s{sREADY}, s{sREADY}, s{sRAW}")
    E(f"s_andn2_b32 s{sT3}, s{sREADY}, s{sLOADED}\ns_mov_b32 s{sLOADED}, s{sREADY}")
    for k in range(8):
        E(f"s_bitcmp1_b32 s{sT3}, {k}\ns_cbranch_scc0 L_skip{k}\ns_mov_b32 s{sT1}, {k << 21}\ns_mov_b32 s{sT2}, {(16 << 20) + (k << 21)}")
        for base, so in ((vSs, sT2), (vD, sT1)):
            if base == vD: E(f"s_cmp_lg_u32 s{sEARLY}, 0\ns_cbranch_scc1 L_skip{k}")
            for f in range(2): E(f"buffer_load_dwordx4 {vr(base + (f * 8 + k) * 4)}, v{vLANE16}, {srd(SP)}, s{so} offen offset:{f * 1024} sc1")
        A(f"L_skip{k}:")
    E(f"s_cmp_eq_u32 s{sRAW}, 0xff\ns_cbranch_scc1 L_sum")
    E(f"s_cmp_lg_u32 s{sT3}, 0\ns_cbranch_scc1 L_poll\ns_bitcmp1_b32 s{sRAW}, s{sG}\ns_cbranch_scc0 L_poll\ns_cmp_lg_u32 s{sGONE}, 0\ns_cbranch_scc1 L_fin\ns_sleep 4\ns_add_u32 s{sCNT}, s{sCNT}, 1\ns_cmp_lt_u32 s{sCNT}, {OPT['limit']}\ns_cbranch_scc1 L_poll")
    E(f"s_lshl_b32 s{sT1}, s{sW}, 8\ns_lshl_b32 s{sT2}, s{sG}, 2\ns_add_u32 s{sT1}, s{sT1}, s{sT2}\ns_add_u32 s{sT1}, s{sT1}, 32\nv_lshlrev_b32 v{t[6]}, 10, v0\nv_mov_b32 v{t[7]}, s{sTOK}")
    E(f"buffer_store_dword v{t[7]}, v{t[6]}, {srd(SF)}, s{sT1} offen sc1\ns_mov_b32 s{sGONE}, 1\ns_waitcnt vmcnt(0)")
    A("L_poll:")
    E(poll + "\ns_waitcnt vmcnt(0)\ns_branch L_look")
    A("L_sum:")
    E("s_waitcnt vmcnt(0)")
    stamp(C, 13)
    def total(base, d):
        for k in range(8):
            for r in range(4):
                a = d + 2 * r if k == 0 else vU + 2 * r
                E(f"v_lshlrev_b32 v{a}, 16, v{base + 4 * k + r}\nv_and_b32 v{a + 1}, 0xffff0000, v{base + 4 * k + r}")
            for r in (range(4) if k else ()): E(f"v_pk_add_f32 v[{d + 2 * r}:{d + 2 * r + 1}], v[{d + 2 * r}:{d + 2 * r + 1}], v[{vU + 2 * r}:{vU + 2 * r + 1}]")
    E(f"s_cmp_lg_u32 s{sEARLY}, 0\ns_cbranch_scc1 L_gated")
    for f in range(2):
        total(vD + 32 * f, vG + 8 * f); silu(lambda k, x: E(x), vG + 8 * f, vU)
    A("L_gated:")
    for f in range(2):
        d, sm = vG + 8 * f, vG + 16 + 8 * f
        total(vSs + 32 * f, sm)
        for r in range(4):
            x = vXD + 4 * f + r; u = vU + 2 * r
            E(f"v_lshlrev_b32 v{u}, 16, v{x}\nv_and_b32 v{u + 1}, 0xffff0000, v{x}")
            E(f"v_pk_fma_f32 v[{u}:{u + 1}], v[{sm + 2 * r}:{sm + 2 * r + 1}], v[{d + 2 * r}:{d + 2 * r + 1}], v[{u}:{u + 1}]\nv_cvt_pk_bf16_f32 v{x}, v{u}, v{u + 1}")
        for h in range(2): E(f"buffer_store_dwordx2 {vr(vXD + 4 * f + 2 * h, 2)}, v{vXA + f}, {srd(SO)}, 0 offen offset:{32 * h}")
    E(f"s_lshl_b32 s{sT1}, 1, s{sJ}\ns_andn2_b32 s{sTODO}, s{sTODO}, s{sT1}\ns_and_b32 s{sT1}, s{sTODO}, s{sAB}\ns_cbranch_scc0 L_fin")
    E(f"s_ff1_i32_b32 s{sJ}, s{sT1}\ns_mov_b32 s{sEARLY}, 0\ns_waitcnt vmcnt(0)\ns_branch L_slice")
    A("L_fin:")

def main_kernel():
    C = Ctx(); E = C.emit; A = C.A
    t = vT
    A(f"{NAME}_kernel:" if OPT['fused'] else "main_kernel:")
    E("s_cmp_ge_u32 s2, 256\ns_cbranch_scc1 L_end")
    if OPT['stamps']: E("s_memrealtime s[96:97]\ns_memtime s[98:99]")
    E("s_load_dwordx16 s[64:79], s[0:1], 0\ns_load_dwordx4 s[80:83], s[0:1], 64\ns_load_dwordx4 s[84:87], s[0:1], 80\ns_memrealtime s[60:61]")
    E(f"v_lshrrev_b32 v{t[0]}, 6, v0\nv_and_b32 v0, 63, v0\nv_readfirstlane_b32 s{sW}, v{t[0]}")
    E(f"s_and_b32 s{sG}, s2, 7\ns_lshr_b32 s{sRB}, s2, 3\ns_and_b32 s{sROT}, s{sRB}, 15\ns_and_b32 s{sODD}, s2, 1")
    E(f"v_and_b32 v{t[0]}, 15, v0\nv_lshrrev_b32 v{t[1]}, 4, v0\ns_lshl_b32 s{sT2}, s{sW}, 14")
    E(f"v_lshlrev_b32 v{t[2]}, 10, v{t[0]}\nv_lshl_add_u32 v{t[2]}, v{t[1]}, 4, v{t[2]}\nv_add_u32 v{t[2]}, s{sT2}, v{t[2]}")
    E(f"s_lshl_b32 s8, s{sROT}, 6\ns_lshl_b32 s{sT1}, s{sRB}, 16\nv_lshlrev_b32 v{vLANE16}, 4, v0")
    for jj in range(1, 16): E(f"s_add_u32 s{8 + jj}, s{7 + jj}, 64\ns_and_b32 s{8 + jj}, s{8 + jj}, 1023")
    E("s_waitcnt lgkmcnt(0)")
    def mk(sr, p, size):
        E(f"s_add_u32 s{sr}, s{p}, s{sT1}\ns_addc_u32 s{sr+1}, s{p+1}, 0\ns_sub_u32 s{sr+2}, {size}, s{sT1}\ns_mov_b32 s{sr+3}, 0x20000")
    mk(S_X, 64, 2048 * 1024)
    for jj in range(16):
        E(f"buffer_load_dwordx4 {vr(vX + 4 * jj)}, v{t[2]}, {srd(S_X)}, s{8 + jj} offen", ('x', jj))
    E(f"s_mul_i32 s{sT1}, s{sRB}, 37\ns_lshr_b32 s{sT1}, s{sT1}, 8\ns_mul_i32 s{sT1}, s{sT1}, 7\ns_sub_u32 s{sROT7}, s{sRB}, s{sT1}")
    E(f"s_mul_i32 s{sT1}, s{sG}, 448\ns_lshl_b32 s{sT2}, s{sW}, 7\ns_add_u32 s{sT1}, s{sT1}, s{sT2}\ns_lshl_b32 s{sT2}, s{sODD}, 6\ns_sub_u32 s{sT1}, s{sT1}, s{sT2}")
    mk(S_WG, 76, 512 * 3584); mk(S_WU, 78, 512 * 3584)
    E(f"s_lshl_b32 s{sT1}, s{sG}, 10\ns_lshl_b32 s{sT3}, s{sW}, 8\ns_add_u32 s{sT1}, s{sT1}, s{sT3}"); mk(S_WQ, 70, 512 * 8192)
    E(f"s_lshl_b32 s{sT1}, s{sG}, 19\ns_add_u32 s{sT1}, s{sT1}, s{sT3}"); mk(S_WO, 72, 4096 * 1024)
    E(f"s_mul_i32 s{sT1}, s{sG}, {224 * 1024}\ns_add_u32 s{sT1}, s{sT1}, s{sT3}"); mk(S_WD, 80, 1792 * 1024)
    E(f"s_lshl_b32 s{sT1}, s{sG}, 19"); mk(S_K, 66, 8 * 524288); mk(S_V, 68, 8 * 524288)
    E(f"s_mov_b32 s{S_K+2}, 524288\ns_mov_b32 s{S_V+2}, 524288")
    E(f"s_lshl_b32 s{sT1}, s{sG}, 5\ns_add_u32 s{sT1}, s{sT1}, s{sRB}\ns_lshl_b32 s{sT1}, s{sT1}, 2\ns_add_u32 s{sT1}, s{sT1}, s{sW}\ns_lshl_b32 s{sT1}, s{sT1}, 14")
    mk(S_WS, 86, 32 << 20)
    E(f"s_or_b32 s{sCAND}, s60, 1")
    E(f"s_mul_i32 s{sRING}, s{sW}, {RING}\ns_add_u32 s{sRING}, s{sRING}, {LDS_R}")
    for n in ('gu', 'q', 'd'):
        E(f"s_mul_i32 s{sOFF[n]}, s{sROT7 if n == 'd' else sROT}, {32 * GEMM[n]['stride']}")
    for k in range(4): E(f"s_add_u32 s{sOB + k}, s{sROT}, {k}\ns_and_b32 s{sOB + k}, s{sOB + k}, 3\ns_lshl_b32 s{sOB + k}, s{sOB + k}, 17")
    E(f"v_lshrrev_b32 v{t[3]}, 3, v0\nv_and_b32 v{t[4]}, 7, v0")
    E(f"v_and_b32 v{t[5]}, 1, v{t[1]}\nv_lshlrev_b32 v{t[5]}, 1, v{t[5]}\nv_xor_b32 v{t[5]}, v{t[5]}, v{t[4]}")
    E(f"v_lshlrev_b32 v{t[6]}, 1, v{t[1]}\nv_xor_b32 v{t[6]}, v{t[6]}, v{t[4]}")
    E(f"s_mul_i32 s{sT1}, s{sODD}, 3\ns_add_u32 s{sT1}, s{sT1}, s{sW}\ns_cmp_eq_u32 s{sT1}, 3\ns_cselect_b32 s{sT2}, 4, 0\ns_lshl_b32 s{sT3}, s{sODD}, 2")
    for n in ('gu', 'q', 'd'):
        st = GEMM[n]['stride']
        E(f"s_mov_b32 s{sT1}, {st}\nv_mul_lo_u32 v{t[7]}, s{sT1}, v{t[3]}")
        for i in range(4):
            d = vVO[n] + i
            if GEMM[n]['nat']: E(f"v_xor_b32 v{d}, {4 * (i % 2)}, v{t[5]}")
            else: E(f"v_mov_b32 v{d}, v{t[6]}")
            if n == 'gu': E(f"v_xor_b32 v{t[2]}, s{sT3}, v{d}\nv_and_b32 v{t[2]}, s{sT2}, v{t[2]}\nv_lshlrev_b32 v{t[2]}, 28, v{t[2]}")
            E(f"v_lshl_add_u32 v{d}, v{d}, 4, v{t[7]}\nv_add_u32 v{d}, {i * (8 * st - 1024)}, v{d}")
            if n == 'gu': E(f"v_add_u32 v{d}, v{d}, v{t[2]}")
    US = UnitStream(front_units(), lambda u: f"s_add_u32 m0, s{sRING}, {(u % 6) * 4096}")
    E(f"v_bfe_u32 v{t[2]}, v0, 2, 2\nv_and_b32 v{t[3]}, 3, v0")
    E(f"v_lshrrev_b32 v{t[4]}, 1, v{t[2]}\nv_and_b32 v{t[5]}, 1, v{t[1]}\nv_lshl_add_u32 v{t[4]}, v{t[5]}, 1, v{t[4]}")
    E(f"v_lshlrev_b32 v{t[4]}, 5, v{t[4]}\nv_lshl_add_u32 v{t[4]}, v{t[3]}, 3, v{t[4]}\nv_lshl_add_u32 v{t[4]}, v{t[2]}, 7, v{t[4]}\nv_add_u32 v{t[4]}, s{sRING}, v{t[4]}")
    E(f"v_lshl_add_u32 v{vANAT}, v{t[1]}, 10, v{t[4]}\nv_lshl_add_u32 v{vAACC}, v{t[1]}, 9, v{t[4]}")
    for b in range(1, 4):
        E(f"v_xor_b32 v{vANAT + b}, {b << 5}, v{vANAT}\nv_xor_b32 v{vAACC + b}, {b << 5}, v{vAACC}")
    E(f"v_lshrrev_b32 v{t[4]}, 1, v{t[1]}\nv_lshl_add_u32 v{t[4]}, v{t[5]}, 1, v{t[4]}")
    E(f"v_xor_b32 v{t[4]}, v{t[4]}, v{t[0]}\nv_lshlrev_b32 v{t[4]}, 4, v{t[4]}\nv_lshl_add_u32 v{t[4]}, v{t[0]}, 8, v{t[4]}\nv_add_u32 v{vKA}, {LDS_K0}, v{t[4]}")
    for j in range(1, 4): E(f"v_xor_b32 v{vKA + j}, {j << 6}, v{vKA}")
    E(f"v_lshl_add_u32 v{t[4]}, v{t[5]}, 2, v{t[2]}\nv_lshlrev_b32 v{t[4]}, 5, v{t[4]}\nv_lshl_add_u32 v{t[4]}, v{t[3]}, 3, v{t[4]}")
    E(f"v_lshl_add_u32 v{t[6]}, v{t[1]}, 2, v{t[2]}\nv_lshl_add_u32 v{t[4]}, v{t[6]}, 8, v{t[4]}\nv_add_u32 v{vVA}, {LDS_V0}, v{t[4]}")
    for db in range(1, 8): E(f"v_xor_b32 v{vVA + db}, {db << 5}, v{vVA}")
    for i in range(4):
        E(f"v_xor_b32 v{t[4]}, v{t[0]}, v{t[1]}\nv_xor_b32 v{t[4]}, {4 * i}, v{t[4]}\nv_lshlrev_b32 v{t[4]}, 4, v{t[4]}\nv_lshl_add_u32 v{vKD + i}, v{t[1]}, 8, v{t[4]}")
    for i in range(2):
        E(f"v_lshlrev_b32 v{t[4]}, 1, v{t[1]}\nv_xor_b32 v{t[4]}, v{t[4]}, v{t[0]}\nv_xor_b32 v{t[4]}, {8 * i}, v{t[4]}\nv_lshlrev_b32 v{t[4]}, 4, v{t[4]}\nv_lshl_add_u32 v{vVD + i}, v{t[1]}, 8, v{t[4]}")
    E(f"s_lshl_b32 s{sT1}, s{sW}, 12\ns_add_u32 s{sKM0}, s{sT1}, {LDS_K}\ns_add_u32 s{sVM0}, s{sT1}, {LDS_V}")
    E(f"s_cmp_lt_u32 s{sW}, 2\ns_cselect_b64 vcc, -1, 0\ns_cselect_b32 s{S_KV}, s{S_K}, s{S_V}\ns_cselect_b32 s{S_KV+1}, s{S_K+1}, s{S_V+1}")
    E(f"s_cselect_b32 s{sKVM}, 0, {LDS_V0 - LDS_K0}\ns_mov_b32 s{S_KV+2}, 524288\ns_mov_b32 s{S_KV+3}, 0x20000")
    E(f"s_and_b32 s{sT1}, s{sW}, 1\ns_lshl_b32 s{sT1}, s{sT1}, 12\ns_add_u32 s{sT1}, s{sT1}, {LDS_K0}\ns_add_u32 s{sKVM}, s{sKVM}, s{sT1}")
    for i in range(4): E(f"v_cndmask_b32 v{vD0 + i}, v{vVD + i % 2}, v{vKD + i}, vcc")
    att_offsets(C)
    for a in range(2):
        E(f"s_lshl_b32 s{sT1}, s{sW}, 1\ns_add_u32 s{sT1}, s{sT1}, {a}\ns_sub_u32 s{sT3}, s{sT1}, s{sODD}\ns_add_u32 s{sT1}, s{sT3}, 7\ns_sub_u32 s{sT1}, s{sT1}, s{sROT7}")
        E(f"s_cmp_ge_u32 s{sT1}, 7\ns_cselect_b32 s{sT2}, 7, 0\ns_sub_u32 s{sT1}, s{sT1}, s{sT2}\ns_cmp_ge_u32 s{sT3}, 7\ns_cselect_b32 s{sT1}, 7, s{sT1}")
        E(f"s_lshl_b32 s{sT1}, s{sT1}, 12\nv_add_u32 v{vHA + a}, s{sT1}, v{vLANE16}")
    E(f"s_sub_u32 s{sT1}, s{sW}, s{sROT}\ns_and_b32 s{sT1}, s{sT1}, 3\ns_lshl_b32 s{sT1}, s{sT1}, 12\ns_add_u32 s{sT1}, s{sT1}, {LDS_O}")
    E(f"v_add_u32 v{vOA}, s{sT1}, v{vLANE16}\nv_add_u32 v{vOB}, {LDS_O}, v{vLANE16}")
    E(f"s_lshl_b32 s{sM0A}, s{sW}, 14\ns_lshl_b32 s{sM0B}, s{sW}, 12\ns_add_u32 s{sM0B}, s{sM0B}, {LDS_FLAG}")
    E(f"v_mov_b32 v{t[4]}, 0x3f803f80")
    for i in range(4): E(f"v_accvgpr_write_b32 a{aONE + i}, v{t[4]}")
    for i in range(4): E(f"v_mov_b32 v{vMT + i}, 0xff800000")
    E(f"s_mov_b32 s{sREDO}, 0\ns_mov_b32 s{sCQ}, {f32(CQ)}")
    E(f"s_lshl_b32 s{sT1}, s{sRB}, 2\ns_add_u32 s{sT1}, s{sT1}, s{sW}\ns_lshl_b32 s{sT3}, s{sW}, 8")
    E(f"s_lshl_b32 s{sT2}, s{sT1}, 12\nv_lshlrev_b32 v59, 6, v0\nv_add_u32 v59, s{sT2}, v59\nv_subrev_u32 v58, s{sT3}, v59")
    stamp(C, 0)
    m, q = 192, 196
    for jj in range(16):
        E(f"s_waitcnt vmcnt({C.vm.need(('x', jj))})")
        x = vr(vX + 4 * jj)
        E(mfma(vr(m), ar(aONE), x, vr(m) if jj else "0"))
        it = US.next() if jj < OPT['paced'] else None
        if it:
            for p in it[0]: E(p)
        E(mfma(vr(q), x, x, vr(q) if jj else "0"))
        if it:
            E(it[1], it[3])
            for p in it[2]: E(p)
    stamp(C, 1)
    E(f"v_mul_f32 v{m}, {f32(1 / 512)}, v{m}")
    for r in range(1, 4): E(f"v_cmp_eq_u32 vcc, {r}, v{t[3]}\nv_cndmask_b32 v{q}, v{q}, v{q + r}, vcc")
    E(f"v_cmp_eq_u32 vcc, v{t[2]}, v{t[1]}\nv_cndmask_b32 v{q}, 0, v{q}, vcc")
    xlane(C, "v_add_f32", q, q + 1)
    rb16 = lambda x: f"v_cvt_pk_bf16_f32 v{x}, v{x}, v{x}\nv_lshlrev_b32 v{x}, 16, v{x}"
    E(f"v_mul_f32 v{q}, {f32(1 / 512)}, v{q}\nv_fma_f32 v{q}, -v{m}, v{m}, v{q}\nv_max_f32 v{q}, 0, v{q}"); E(rb16(q))
    E(f"v_add_f32 v{q}, {f32(1e-5)}, v{q}"); E(rb16(q))
    E(f"v_sqrt_f32 v{q}, v{q}"); E(rb16(q)); E(rb16(m))
    E(f"v_rcp_f32 v{q}, v{q}\ns_lshl_b32 s{sT1}, s{sW}, 10\nv_mul_f32 v{q}, s{sCQ}, v{q}\nv_mul_f32 v{m}, v{m}, v{q}\nv_add_u32 v{t[4]}, s{sT1}, v{vLANE16}")
    for jj in range(16):
        for r in range(4):
            x = vX + 4 * jj + r; a, b = 206 + 2 * (r % 2), 207 + 2 * (r % 2)
            E(f"v_lshlrev_b32 v{a}, 16, v{x}\nv_and_b32 v{b}, 0xffff0000, v{x}")
            if r % 2:
                for a, xx in ((206, x - 1), (208, x)): E(f"v_pk_fma_f32 v[{a}:{a + 1}], v[{a}:{a + 1}], v[{q}:{q + 1}], v[{m}:{m + 1}] op_sel_hi:[1,0,0] neg_lo:[0,0,1] neg_hi:[0,0,1]")
                for a, xx in ((206, x - 1), (208, x)): E(f"v_cvt_pk_bf16_f32 v{xx}, v{a}, v{a + 1}")
        E(f"ds_write_b128 v{t[4]}, {vr(vX + 4 * jj)} offset:{LDS_A + jj * 4096}")
    E("s_waitcnt lgkmcnt(0)\ns_barrier")
    stamp(C, 2)
    F1 = Fill(128, 128 + 118)
    hw = lambda a, tb: f"ds_write_b128 v{vHA + a}, {vr(vQ + (a * 4 + tb) * 4)} offset:{LDS_A + tb * 1024}"
    for a in range(2):
        for tb in range(4):
            for nb in (2 * a, 2 * a + 1):
                gq, uq = vX + (nb * 4 + tb) * 4, vX + ((nb + 4) * 4 + tb) * 4
                for r in range(4): F1.add('p', f"v_mul_f32 v{gq + r}, {f32(-LOG2E / CQ)}, v{gq + r}")
                for r in range(4): F1.add('t', f"v_exp_f32 v{gq + r}, v{gq + r}")
                for r in range(4): F1.add('p', f"v_fma_f32 v{gq + r}, v{gq + r}, s{sCQ}, s{sCQ}")
                for r in range(4): F1.add('t', f"v_rcp_f32 v{gq + r}, v{gq + r}")
                for r in range(4): F1.add('p', f"v_mul_f32 v{gq + r}, v{gq + r}, v{uq + r}")
                h = vQ + (a * 4 + tb) * 4 + 2 * (nb % 2)
                F1.add('p', f"v_cvt_pk_bf16_f32 v{h}, v{gq}, v{gq + 1}\nv_cvt_pk_bf16_f32 v{h + 1}, v{gq + 2}, v{gq + 3}")
    F2 = Fill(257, 256 + 56)
    for k, (qb, j) in enumerate((qb, j) for qb in range(4) for j in range(4)):
        lo, hi, d = aO + (2 * j * 4 + qb) * 4, aO + ((2 * j + 1) * 4 + qb) * 4, vQ + (qb * 4 + j) * 4
        for hh, src in enumerate((lo, hi)):
            for r in range(4): F2.add('p', f"v_accvgpr_read_b32 v{t[4 * hh + r]}, a{src + r}")
        if k: F2.add('p', prev)
        F2.add('p', f"v_cvt_pk_bf16_f32 v{d}, v{t[0]}, v{t[1]}\nv_cvt_pk_bf16_f32 v{d + 2}, v{t[4]}, v{t[5]}")
        F2.add('p', f"v_cvt_pk_bf16_f32 v{d + 1}, v{t[2]}, v{t[3]}\nv_cvt_pk_bf16_f32 v{d + 3}, v{t[6]}, v{t[7]}")
        prev = f"v_permlane16_swap_b32 v{d}, v{d + 2}\nv_permlane16_swap_b32 v{d + 1}, v{d + 3}"
    F2.add('p', prev)
    bursts = {128 + 71: [(hw(0, tb), 'h') for tb in range(4)], 128 + 119: [(hw(1, tb), 'h') for tb in range(4)]}
    if OPT['kvearly']:
        fp = first_pieces()
        bursts[128 + 127] = [(fp[0][0][0], None), ("s_nop 0", None)] + [(x[1], 'kv0') for x in fp[:4]]
        bursts[256 + 7] = [(fp[4][0][0], None), ("s_nop 0", None)] + [(x[1], 'kv0') for x in fp[4:]] + [(x, None) for x in fp[7][2]]
    else: US.after = first_pieces()
    groups = front_groups('gu', 0, xacc, 'q') + front_groups('q', 32, lambda nb, tb: ar(aO + (nb * 4 + tb) * 4), 'd') + front_groups('d', 64, xacc, None)
    run_gemm(C, groups, US, [F1, F2], bars={128 + 61: None, 128 + 120: 'h'}, marks={128: 3, 256: 4}, bursts=bursts)
    stamp(C, 5)
    flush(C, F2)
    E(f"s_waitcnt vmcnt({C.vm.need('kv0')})\ns_barrier")
    for n in range(8): E(kread(ar(aPre(n)), n % 4, (n // 4) * 4096)[0], ('k0', n))
    E(f"s_lshl_b32 s{sT1}, s{sW}, 12\nv_add_u32 v{vDA}, s{sT1}, v{vLANE16}")
    F = Fill()
    for a in range(4):
        for tb in range(4):
            lo = vX + ((2 * a) * 4 + tb) * 4; hi = lo + 16
            for r, x in enumerate((lo, lo + 2, hi, hi + 2)): F.add('p', f"v_cvt_pk_bf16_f32 v{lo + r}, v{x}, v{x + 1}")
            if a < 2: F.add('w', f"ds_write_b128 v{vDA}, {vr(lo)} offset:{LDS_A + a * 16384 + tb * 1024}")
            else:
                for r in range(4): F.add('p', f"v_accvgpr_write_b32 a{aD + ((a - 2) * 4 + tb) * 4 + r}, v{lo + r}")
        if a == 0: flush(C, F)
    t1 = [(p, d, q_, 't1') for p, d, q_, _ in tile_dma('k', 1) + tile_dma('v', 1)]
    for n in range(8):
        E(f"s_waitcnt lgkmcnt({C.lg.need(('k0', n))})")
        for qb in range(4):
            E(qk_mfma(n, qb, vS[0], ar(aPre(n)), zero=True))
            if qb == 0: emit_dmas(C, [t1.pop(0)]); continue
            room = 3
            while F.q and room > 0:
                kind, text, tag = F.q.pop(0); E(text, tag); room -= F.W[kind]
    flush(C, F)
    E(f"s_sub_u32 s{sT1}, s{sM0A}, s{sRING}\ns_sub_u32 s{sT2}, s{sM0B}, s{sM0A}")
    for b in range(4): E(f"v_add_u32 v{vAACC + b}, s{sT1}, v{vAACC + b}")
    for b in range(4): E(f"v_add_u32 v{vANAT + b}, s{sT2}, v{vAACC + b}")
    A("L_max:")
    for x in group_reads(0, 8192, 0) + group_reads(1, 8192, 0): E(x)
    for qb in range(4):
        x, y, mm = vS[0] + qb * 4, vS[0] + (4 + qb) * 4, vE + qb
        E(f"v_max3_f32 v{mm}, v{x}, v{x+1}, v{vMT + qb}\nv_max3_f32 v{mm}, v{x+2}, v{x+3}, v{mm}\nv_max3_f32 v{mm}, v{y}, v{y+1}, v{mm}\nv_max3_f32 v{mm}, v{y+2}, v{y+3}, v{mm}")
    for op in ("v_permlane32_swap_b32", "v_permlane16_swap_b32"):
        for qb in range(4): E(f"v_mov_b32 v{vE + 4 + qb}, v{vE + qb}")
        for qb in range(4): E(f"{op} v{vE + qb}, v{vE + 4 + qb}")
        for qb in range(4): E(f"v_max_f32 v{vE + qb}, v{vE + qb}, v{vE + 4 + qb}")
    for qb in range(4):
        for r in range(4): E(f"v_sub_f32 v{vNM + 4 * qb + r}, 0, v{vE + qb}")
    for qb in range(4):
        x, y = vS[0] + qb * 4, vS[0] + (4 + qb) * 4
        for r in range(4): E(f"v_sub_f32 v{x + r}, v{x + r}, v{vE + qb}\nv_sub_f32 v{y + r}, v{y + r}, v{vE + qb}")
    E(f"s_mov_b32 s{sIT}, 0\ns_waitcnt lgkmcnt(1)")
    stamp(C, 6)
    step(C, 0, 8192, 0, [group_reads(0, 16384, 0), group_reads(1, 16384, 0)], [], pv=False)
    ext = {8 + j: [f"v_add_u32 v{vKA + j}, {LDS_K - LDS_K0}, v{vKA + j}"] for j in range(4)}
    for db in range(8): ext.setdefault(min(8 + db, 15) if db > 1 else 7 + db, []).append(f"v_add_u32 v{vVA + db}, {LDS_V - LDS_V0}, v{vVA + db}")
    wt = [([], f"buffer_load_dword v57, v58, {srd(S_WO)}, 0 offen", [], None)] if OPT['wotouch'] else []
    step(C, 1, 16384, 0, [group_reads(0, 16384, 0), group_reads(1, 16384, 0)], [(p, d, q_, ('t', 2)) for p, d, q_, _ in tile_dma('k', 2) + tile_dma('v', 2)] + wt,
         sync=lambda: C.vm.need('t1'), zero=True, extra=ext)
    if OPT['fused']:
        E(f"s_or_b32 s{sT1}, s2, s{sW}\ns_cmp_eq_u32 s{sT1}, 0\ns_cbranch_scc0 L_notok\nv_mov_b32 v{t[0]}, s{sCAND}\nv_mov_b32 v{t[1]}, 0\ns_mov_b64 exec, 1")
        A(f"global_atomic_cmpswap v{t[1]}, v[{t[0]}:{t[1]}], s[84:85] sc1\ns_mov_b64 exec, -1\nL_notok:")
    for k in range(8): E(f"ds_write_b128 v{vDA}, {ar(aD + 4 * k)} offset:{LDS_A + 32768 + (k // 4) * 16384 + (k % 4) * 1024}")
    E(f"s_mov_b32 s{S_DS}, s{S_WS}\ns_mov_b32 s{S_DS + 1}, s{S_WS + 1}\ns_mov_b32 s{S_DS + 3}, 0x20000\ns_mov_b32 s{sDOFF}, 0")
    E(f"s_cmp_eq_u32 s{sREDO}, 0\ns_cselect_b32 s{S_DS + 2}, 16384, 0\ns_or_b32 s{sT1}, s{sREDO}, s{sW}\ns_cmp_eq_u32 s{sT1}, 0\ns_cselect_b32 s{sTRIG}, 5, -1")
    E("s_waitcnt lgkmcnt(0)")
    stamp(C, 7)
    A(".p2align 6\nL_loop:")
    iteration(C, 0); iteration(C, 1)
    iteration(C, 2, tail=(f"s_add_u32 s{sIT}, s{sIT}, 1", f"s_cmp_lt_u32 s{sIT}, 10", "s_cbranch_scc1 L_loop"),
              hook=(f"s_cmp_eq_u32 s{sIT}, s{sTRIG}", "s_cbranch_scc1 L_dready", "L_dback:") if OPT['fused'] else ())
    C.vm.tag['t32'] = C.vm.n
    stamp(C, 8)
    UO = UnitStream(o_units(), lambda u: f"s_add_u32 m0, s{sM0A if u % 6 < 4 else sM0B}, {(u % 6) * 4096 if u % 6 < 4 else (5 - u % 6) * 16384}")
    E(o_off(0))
    if OPT['fused']:
        E(f"s_lshl_b32 s{sT1}, s{sRB}, 2\nv_mov_b32 v{t[1]}, 0\nv_mov_b32 v{t[3]}, s{sT1}")
        A(f"global_load_dword v{t[0]}, v{t[1]}, s[84:85] sc1\nglobal_load_dword v{t[2]}, v{t[3]}, s[84:85] offset:128 sc1"); C.vm.issue(); C.vm.issue('t32')
        slice_srd(C, S_DP, sG)
    step(C, 0, 16384, 16384, [vread(aF, 0, 16384 + 8192), vread(aF + 4, 1, 16384 + 8192)], [UO.next() for _ in range(12)])
    step(C, 1, 0, 16384 + 8192, [vread(aF, 0, 32768), vread(aF + 4, 1, 32768)], [], sync=lambda: C.vm.need('t32'), qk=False)
    dl = []
    if OPT['fused']:
        E(f"v_readfirstlane_b32 s{sT1}, v{t[2]}\ns_nop 0\ns_cmp_eq_u32 s{sT1}, {8 if OPT['early'] else 99}\ns_cselect_b32 s{sEARLY}, 1, 0\ns_cselect_b32 s{S_DP + 2}, s{S_DP + 2}, 0")
        dl = [([f"s_mov_b32 s{sST}, {(k // 2) << 21}"] if k % 2 == 0 else [], f"buffer_load_dwordx4 {ar(aD + 4 * k)}, v{vLANE16}, {srd(S_DP)}, s{sST} offen offset:{(k % 2) * 1024} sc1", [], 'dl') for k in range(16)]
    for qb in range(4): E(sum_mfma(qb, vP[1]))
    for n in range(8, 16):
        rd = vread(aF + 4 * ((n + 2) % 4), n + 2 - 8, 32768) if n + 2 < 16 else []
        for qb in range(4):
            E(pv_mfma(n, qb, vP[1]))
            if qb == 0:
                for x in rd: E(x)
            if qb == 1 and n < 12 and OPT['wo3']: emit_dmas(C, [UO.next()])
            if qb in (1, 2) and n >= 12 and dl: emit_dmas(C, [dl.pop(0)], nop=False)
            if qb == 2 and n >= 12: E(f"v_accvgpr_read_b32 v{vE + n - 12}, a{aL + 4 * (n - 12)}")
            if qb == 3 and n < 15: E(f"s_waitcnt lgkmcnt({len(rd)})")
    stamp(C, 9)
    E(f"s_mov_b32 s{sT1}, {f32(2.0 ** OPT['thr'])}\nv_mov_b32 v{vE + 4}, 0")
    for qb in range(4): E(f"v_cmp_nlt_f32 vcc, v{vE + qb}, s{sT1}\nv_rcp_f32 v{vE + qb}, v{vE + qb}\nv_cndmask_b32 v{vE + 4}, v{vE + 4}, 1, vcc")
    E(f"s_lshl_b32 s{sT1}, s{sW}, 8\ns_add_u32 s{sT1}, s{sT1}, {LDS_FLAG}\nv_lshl_add_u32 v{vE + 5}, v0, 2, s{sT1}")
    for w in range(4): E(f"ds_write_b32 v{vE + 5}, v{vE + 4} offset:{4096 * w}")
    for a in range(4):
        for qb in range(4):
            b = vS[0] + qb * 16
            for hh in range(2):
                for r in range(4): E(f"v_accvgpr_read_b32 v{b + 4 * hh + r}, a{aO + ((2 * a + hh) * 4 + qb) * 4 + r}")
            rl = vE + (qb & ~1); sel = qb & 1
            if not OPT['pk']:
                for r in range(8): E(f"v_mul_f32 v{b + r}, v{b + r}, v{vE + qb}")
            for r in (range(0, 8, 2) if OPT['pk'] else ()): E(f"v_pk_mul_f32 v[{b + r}:{b + r + 1}], v[{b + r}:{b + r + 1}], v[{rl}:{rl + 1}] op_sel:[0,{sel}] op_sel_hi:[1,{sel}]")
            for r in range(4): E(f"v_cvt_pk_bf16_f32 v{b + 8 + r}, v{b + 2 * r}, v{b + 2 * r + 1}")
            E(f"ds_write_b128 v{vOA}, {vr(b + 8)} offset:{a * 16384 + qb * 1024}")
            if dl: emit_dmas(C, [dl.pop(0)], nop=False)
    E(f"v_lshl_add_u32 v{vE + 5}, v0, 2, s{sM0B}\ns_waitcnt lgkmcnt(0)\ns_barrier")
    for w in range(4): E(f"ds_read_b32 v{vE + 6 + w}, v{vE + 5} offset:{256 * w}")
    E(f"s_waitcnt lgkmcnt(0)\nv_or_b32 v{vE + 6}, v{vE + 6}, v{vE + 7}\nv_or3_b32 v{vE + 6}, v{vE + 6}, v{vE + 8}, v{vE + 9}")
    E(f"v_cmp_ne_u32 vcc, 0, v{vE + 6}\ns_cmp_eq_u32 s{sREDO}, 0\ns_cselect_b64 s[{sC0}:{sC1}], vcc, 0\ns_cmp_lg_u64 s[{sC0}:{sC1}], 0\ns_cbranch_scc1 L_slow")
    stamp(C, 10)
    Fs = [Fill(113, 128), Fill()]
    for a in range(4): pack_store(Fs[a // 2], a, [f"s_mov_b32 s{sST}, {(16 << 20) + a * 4096}"])
    FG = Fill(16, 112)
    if OPT['fused']:
        for f in range(2):
            d = vG + 8 * f
            for k in range(8):
                for r in range(4):
                    x = vG + 16 + 4 * (r % 2) + 8 * (k % 2); a = d + 2 * r if k == 0 else x + 1
                    FG.add('p', f"v_accvgpr_read_b32 v{x}, a{aD + 4 * (2 * k + f) + r}\nv_lshlrev_b32 v{a}, 16, v{x}\nv_and_b32 v{a + 1}, 0xffff0000, v{x}")
                    if k: FG.add('p', f"v_add_f32 v{d + 2 * r}, v{d + 2 * r}, v{a}\nv_add_f32 v{d + 2 * r + 1}, v{d + 2 * r + 1}, v{a + 1}")
            silu(FG.add, d, vG + 32)
    run_gemm(C, o_groups(), UO, [FG, Fs[0]], after_tag={16: 'dl'} if OPT['fused'] else None)
    stamp(C, 11)
    flush(C, Fs[0]); flush(C, Fs[1])
    if OPT['fused']: tail(C)
    if OPT['stamps']:
        E("s_waitcnt vmcnt(0)"); stamp(C, 14 if OPT['fused'] else 12)
        E(f"s_memrealtime s[100:101]\ns_waitcnt lgkmcnt(0)\nv_writelane_b32 v55, s100, 18\nv_writelane_b32 v55, s96, 17\nv_writelane_b32 v55, s98, 16")
        E(f"s_load_dwordx2 s[4:5], s[0:1], 88\ns_waitcnt lgkmcnt(0)\ns_add_u32 s4, s4, {64 << 20}\ns_addc_u32 s5, s5, 0\ns_mov_b32 s6, 0x100000\ns_mov_b32 s7, 0x20000")
        E(f"s_lshl_b32 s{sT1}, s2, 2\ns_add_u32 s{sT1}, s{sT1}, s{sW}\ns_lshl_b32 s{sT1}, s{sT1}, 8\nv_lshlrev_b32 v2, 2, v0\nbuffer_store_dword v55, v2, s[4:7], s{sT1} offen")
    A("L_end:\ns_endpgm")
    if OPT['fused']:
        A("L_dready:")
        E(f"s_lshl_b32 s{sT1}, s{sRB}, 2\nv_mov_b32 v{t[0]}, s{sT1}\nv_mov_b32 v{t[1]}, 1\ns_mov_b64 exec, 1")
        A(f"global_atomic_add v{t[0]}, v{t[1]}, s[84:85] offset:128 sc1\ns_mov_b64 exec, -1\ns_branch L_dback")
    A("L_slow:")
    E(f"s_waitcnt vmcnt(0)\ns_mov_b32 s{sREDO}, 1\ns_mov_b32 s{sIT}, 0\ns_lshl_b32 s{sKOFF}, s{sW}, 12\ns_mov_b32 m0, s{sKM0}")
    A("L_slow_loop:")
    E("s_barrier")
    for i in range(4): E(kdma(i))
    E(f"s_add_u32 s{sKOFF}, s{sKOFF}, 16384\ns_waitcnt vmcnt(0)\ns_barrier")
    for kb in range(4):
        for j in range(4): E(kread(ar(aPre(j)), j, kb * 4096)[0])
        E("s_waitcnt lgkmcnt(0)")
        for j in range(4):
            for qb in range(4): E(qk_mfma(j, qb, vS[0], ar(aPre(j)), zero=True))
        for qb in range(4):
            x = vS[0] + qb * 4
            E(f"v_max3_f32 v{vMT + qb}, v{x}, v{x+1}, v{vMT + qb}\nv_max3_f32 v{vMT + qb}, v{x+2}, v{x+3}, v{vMT + qb}")
    E(f"s_add_u32 s{sIT}, s{sIT}, 1\ns_cmp_lt_u32 s{sIT}, 32\ns_cbranch_scc1 L_slow_loop\ns_barrier")
    for j in range(4): E(f"v_subrev_u32 v{vKA + j}, {LDS_K - LDS_K0}, v{vKA + j}")
    for db in range(8): E(f"v_subrev_u32 v{vVA + db}, {LDS_V - LDS_V0}, v{vVA + db}")
    att_offsets(C)
    E(f"s_lshl_b32 s{sT1}, s{sW}, 12\nv_add_u32 v{vDA}, s{sT1}, v{vLANE16}")
    emit_dmas(C, first_pieces() + tile_dma('k', 1) + tile_dma('v', 1))
    E("s_waitcnt vmcnt(0)\ns_barrier")
    for n in range(8): E(kread(ar(aPre(n)), n % 4, (n // 4) * 4096)[0])
    E("s_waitcnt lgkmcnt(0)")
    for n in range(8):
        for qb in range(4): E(qk_mfma(n, qb, vS[0], ar(aPre(n)), zero=True))
    E("s_nop 7\ns_branch L_max")
    return A

def final_kernel():
    A = Asm()
    A("final_kernel:")
    A("s_cmp_ge_u32 s2, 256\ns_cbranch_scc1 L_fend")
    if OPT['stamps']: A("s_memrealtime s[30:31]")
    A("s_load_dwordx2 s[20:21], s[0:1], 0\ns_load_dwordx2 s[22:23], s[0:1], 72\ns_load_dwordx2 s[24:25], s[0:1], 88")
    A("v_lshrrev_b32 v1, 6, v0\nv_and_b32 v0, 63, v0\nv_readfirstlane_b32 s3, v1")
    A("s_lshr_b32 s16, s2, 3\ns_and_b32 s17, s2, 7")
    A("s_lshl_b32 s17, s17, 3\ns_lshl_b32 s3, s3, 1\ns_add_u32 s17, s17, s3")
    A("s_lshl_b32 s18, s16, 16\ns_lshl_b32 s19, s17, 10\ns_add_u32 s18, s18, s19")
    A("v_lshlrev_b32 v1, 4, v0\ns_waitcnt lgkmcnt(0)")
    A(f"s_add_u32 s4, s24, s18\ns_addc_u32 s5, s25, 0\ns_sub_u32 s6, {32 << 20}, s18\ns_mov_b32 s7, 0x20000")
    A(f"s_mov_b32 s8, s20\ns_mov_b32 s9, s21\ns_mov_b32 s10, {2 << 20}\ns_mov_b32 s11, 0x20000")
    A(f"s_mov_b32 s12, s22\ns_mov_b32 s13, s23\ns_mov_b32 s14, {2 << 20}\ns_mov_b32 s15, 0x20000")
    A("s_mov_b32 s26, 0")
    for k in range(16):
        for f in range(2): A(f"buffer_load_dwordx4 {vr(16 + (f * 16 + k) * 4)}, v1, s[4:7], s26 offen offset:{f * 1024}")
        if k < 15: A(f"s_add_u32 s26, s26, {2 << 20}")
    A("s_and_b32 s27, s17, 3\ns_lshl_b32 s27, s27, 4\ns_lshl_b32 s28, s16, 6\ns_add_u32 s27, s27, s28\ns_lshl_b32 s27, s27, 10")
    A("s_lshr_b32 s28, s17, 2\ns_lshl_b32 s28, s28, 6\ns_add_u32 s27, s27, s28")
    A("v_and_b32 v2, 15, v0\nv_lshrrev_b32 v3, 4, v0\nv_lshlrev_b32 v2, 10, v2\nv_lshl_add_u32 v2, v3, 3, v2\nv_add_u32 v2, s27, v2\nv_add_u32 v3, 16384, v2")
    for f in range(2):
        A(f"buffer_load_dwordx2 {vr(4 + 4 * f, 2)}, v{2 + f}, s[8:11], 0 offen\nbuffer_load_dwordx2 {vr(6 + 4 * f, 2)}, v{2 + f}, s[8:11], 0 offen offset:32")
    acc = lambda f, kind: 144 + (f * 2 + kind) * 8
    for k in range(16):
        for f in range(2):
            A(f"s_waitcnt vmcnt({35 - 2 * k - f})")
            src = 16 + (f * 16 + k) * 4; d = acc(f, k // 8)
            for r in range(4):
                if k % 8 == 0:
                    A(f"v_lshlrev_b32 v{d + 2 * r}, 16, v{src + r}\nv_and_b32 v{d + 2 * r + 1}, 0xffff0000, v{src + r}")
                else:
                    A(f"v_lshlrev_b32 v12, 16, v{src + r}\nv_and_b32 v13, 0xffff0000, v{src + r}\nv_add_f32 v{d + 2 * r}, v{d + 2 * r}, v12\nv_add_f32 v{d + 2 * r + 1}, v{d + 2 * r + 1}, v13")
    A("s_waitcnt vmcnt(0)")
    for f in range(2):
        d, s = acc(f, 0), acc(f, 1)
        for e in range(8): A(f"v_mul_f32 v{16 + e}, {f32(-math.log2(math.e))}, v{d + e}")
        for e in range(8): A(f"v_exp_f32 v{16 + e}, v{16 + e}")
        for e in range(8): A(f"v_add_f32 v{16 + e}, 1.0, v{16 + e}")
        for e in range(8): A(f"v_rcp_f32 v{16 + e}, v{16 + e}")
        for e in range(8): A(f"v_mul_f32 v{d + e}, v{d + e}, v{16 + e}")
        for r in range(4):
            x = 4 + 4 * f + r
            A(f"v_lshlrev_b32 v12, 16, v{x}\nv_and_b32 v13, 0xffff0000, v{x}")
            A(f"v_fma_f32 v12, v{s + 2 * r}, v{d + 2 * r}, v12\nv_fma_f32 v13, v{s + 2 * r + 1}, v{d + 2 * r + 1}, v13\nv_cvt_pk_bf16_f32 v{x}, v12, v13")
        A(f"buffer_store_dwordx2 {vr(4 + 4 * f, 2)}, v{2 + f}, s[12:15], 0 offen\nbuffer_store_dwordx2 {vr(6 + 4 * f, 2)}, v{2 + f}, s[12:15], 0 offen offset:32")
    if OPT['stamps']:
        A(f"s_waitcnt vmcnt(0)\ns_memrealtime s[32:33]\ns_waitcnt lgkmcnt(0)\ns_add_u32 s4, s24, {65 << 20}\ns_addc_u32 s5, s25, 0\ns_mov_b32 s6, 0x100000")
        A("s_lshl_b32 s26, s2, 3\nv_mov_b32 v2, 0\nv_mov_b32 v4, s30\nv_mov_b32 v5, s32\nbuffer_store_dwordx2 v[4:5], v2, s[4:7], s26 offen")
    A("L_fend:\ns_endpgm")
    return A

def descriptor(name, vg, acc, sg=102):
    return (f".amdhsa_kernel {name}\n  .amdhsa_next_free_vgpr {vg}\n  .amdhsa_next_free_sgpr {sg}\n  .amdhsa_accum_offset {acc}\n"
            f"  .amdhsa_group_segment_fixed_size 0\n  .amdhsa_kernarg_size 96\n  .amdhsa_user_sgpr_count 2\n"
            f"  .amdhsa_user_sgpr_kernarg_segment_ptr 1\n  .amdhsa_system_sgpr_workgroup_id_x 1\n"
            f"  .amdhsa_float_denorm_mode_32 3\n.end_amdhsa_kernel\n")

def build(verbose=False):
    head = [l for l in open(f"cdna_kernels/{NAME}.s.ref").read().split("\n") if l.startswith(";") and "@launch" not in l and "Override launch" not in l and "grid=ceil" not in l]
    out = "\n".join(head) + "\n"
    if OPT['fused']:
        out += f"; @launch grid=(256,1,1) block=(256,1,1) lds={LDS_TOTAL}\n"
        kernels = [(NAME + "_kernel", main_kernel, (512, 256))]
    else:
        out += f"; @launch kernel=main_kernel grid=(256,1,1) block=(256,1,1) lds={LDS_TOTAL}\n"
        out += "; @launch kernel=final_kernel grid=(256,1,1) block=(256,1,1) lds=0\n"
        kernels = [("main_kernel", main_kernel, (512, 256)), ("final_kernel", final_kernel, (176, 176, 40))]
    out += '.amdgcn_target "amdgcn-amd-amdhsa--gfx950"\n.text\n'
    for name, fn, _ in kernels:
        A = fn(); A.fix_hazards(verbose)
        out += f".globl {name}\n.p2align 8\n.type {name},@function\n" + A.text()
    out += '.section .rodata,"a"\n'
    for name, _, d in kernels: out += ".p2align 6\n" + descriptor(name, *d)
    return out

if __name__ == "__main__":
    dst = sys.argv[1] if len(sys.argv) > 1 else f"cdna_kernels/{NAME}.s"
    for a in sys.argv[2:]:
        k, v = a.split("="); OPT[k] = int(v)
    open(dst, "w").write(build(verbose=True))
```

```python
import math, struct, sys
from asmlib import Asm, Ins

NAME = "recurrent_scan__gqa_block_cached__glu_gated_glu__prompt"
OPT = dict(stamps=0, thr=30, room1=1, wotouch=1, paced=12, kvearly=0, kvst=0, pk=1, wo3=1, fused=1, limit=4096, dropflag=-1, early=1, dbg=0)

def f32(x): return "0x%08x" % struct.unpack("<I", struct.pack("<f", x))[0]
def vr(b, n=4): return f"v[{b}:{b+n-1}]"
def ar(b, n=4): return f"a[{b}:{b+n-1}]"
def mfma(d, a, b, c): return f"v_mfma_f32_16x16x32_bf16 {d}, {a}, {b}, {c}"
LOG2E = math.log2(math.e)
CQ = LOG2E / math.sqrt(128.0)

LDS_A = 0
LDS_R = 65536
RING = 24576
LDS_K, LDS_V = LDS_R, LDS_R + 49152
LDS_K0, LDS_K1, LDS_V0 = 32768, 40960, 57344
LDS_O = LDS_R
LDS_FLAG = LDS_R + 65536
LDS_TOTAL = 163840

S_X, S_K, S_V, S_WQ, S_WO, S_WG, S_WU, S_WD, S_WS, S_KV = 4, 8, 12, 16, 20, 24, 28, 32, 36, 88
sG, sRB, sW, sROT, sROT7, sRING = 40, 41, 42, 43, 44, 45
sOFF = {'gu': 64, 'q': 66, 'd': 68, 'o': 46}
sWR, sOB = 48, 70
sTMP, sT1, sT2, sT3 = 50, 51, 52, 53
sKOFF, sVOFF, sKM0, sVM0, sIT, sREDO = 54, 55, 56, 57, 58, 59
sC0, sC1, sCQ, sODD = 60, 61, 62, 63
sM0A, sM0B, sKV0, sKVM = 92, 93, 94, 95
sST = 3
S_DS, S_DP = S_WG, S_WU
sDOFF, sTRIG, sEARLY = 64, 65, 66
sCAND, sTOK, sJ, sREADY, sLOADED, sRAW, sAB, sCNT, sGONE, sTODO = 74, 75, 76, 77, 78, 79, 80, 81, 49, 47
def srd(b): return f"s[{b}:{b+3}]"

vLANE16 = 1
vT = list(range(2, 10))
vANAT, vAACC = 10, 14
vVO = {'gu': 18, 'q': 22, 'd': 26, 'o': 26}
vD0 = 30
vKA, vVA, vKD, vVD = 34, 38, 46, 50
vHA, vOB, vOA, vMT = 52, 54, 56, 60
vDA = 18
vQ, vX = 64, 128
vS = [128, 160]; vP = [192, 208]; vNM = 224; vE = 240
aF, aB, aONE, aL, aO = 0, 16, 108, 112, 128
def aPre(n): return 4 * n if n < 4 else 80 + 4 * (n - 4)
aB2 = 80
aD = 16

GEMM = {
    'gu': dict(nk=16, stride=3584, nat=True),
    'q':  dict(nk=16, stride=8192, nat=True),
    'd':  dict(nk=7, stride=1024, nat=False),
    'o':  dict(nk=16, stride=1024, nat=False),
}

class Counter:
    def __init__(self): self.n = 0; self.tag = {}
    def issue(self, tag=None):
        self.n += 1
        if tag is not None: self.tag[tag] = self.n
    def need(self, tag): return self.n - self.tag[tag]

class Ctx:
    def __init__(self):
        self.A = Asm(); self.vm = Counter(); self.lg = Counter()
    def emit(self, text, tag=None):
        for line in text.split('\n'):
            self.A(line)
            mn = line.strip().split()[0]
            if mn.startswith('buffer_'): self.vm.issue(tag)
            elif mn.startswith('ds_'): self.lg.issue(tag)

class UnitStream:
    def __init__(self, units, m0, after=()):
        self.units = units; self.m0 = m0; self.pos = 0; self.after = list(after)
    def remaining(self): return len(self.units) * 4 - self.pos
    def next(self):
        u, i = divmod(self.pos, 4); self.pos += 1
        U = self.units[u]
        d = f"buffer_load_dwordx4 v{vVO[U['g']] + i}, {srd(U['srd'])}, s{U['so']} offen offset:{i * 1024} lds"
        return ([self.m0(u)] if i == 0 else []), d, (U['lazy'] if i == 0 else []), ('u', id(self), u)
    def emit(self, C, count):
        assert count % 4 == 0 and self.pos % 4 == 0
        for _ in range(count // 4):
            L = [self.next() for _ in range(4)]
            C.emit(L[0][0][0] + "\ns_nop 0")
            for pre, d, post, tag in L: C.emit(d, tag)
            for p in L[0][2]: C.emit(p)

def front_units():
    out = []
    seq = [(n, s, h) for n in ('gu', 'q', 'd') for s in range(GEMM[n]['nk']) for h in range(2)]
    for k, (n, s, h) in enumerate(seq):
        G = GEMM[n]; step = 32 * G['stride']
        cur, nxt = sOFF[n] + s % 2, sOFF[n] + (s + 1) % 2
        lazy = []
        if h == 0 and n != 'gu': lazy = [f"s_add_u32 s{sTMP}, s{cur}, 128"]
        if h == 1 and s < G['nk'] - 1:
            lazy = [f"s_add_u32 s{nxt}, s{cur}, {step}", f"s_sub_u32 s{sWR}, s{nxt}, {step * G['nk']}", f"s_min_u32 s{nxt}, s{nxt}, s{sWR}"]
        out.append(dict(g=n, srd={'gu': (S_WG, S_WU)[h], 'q': S_WQ, 'd': S_WD}[n], so=sTMP if (h and n != 'gu') else cur, lazy=lazy))
    return out

O_ORDER = [(s, h) for s in range(12) for h in range(2)] + [(s, 0) for s in range(12, 16)] + [(s, 1) for s in range(12, 16)]
def o_off(k):
    s, h = O_ORDER[k]
    return f"s_add_u32 s{sOFF['o'] + k % 2}, s{sOB + s % 4}, {(s // 4) * 32768 + h * 128}"
def o_units():
    return [dict(g='o', srd=S_WO, so=sOFF['o'] + k % 2, lazy=[o_off(k + 1)] if k < 31 else []) for k in range(32)]

class Fill:
    W = {'p': 1, 't': 2, 'w': 2, 'v': 2, 's': 0, 'G': 0}
    def __init__(self, lo=0, hi=0): self.q = []; self.lo = lo; self.hi = hi; self.done = 0; self.total = 0
    def add(self, kind, text, tag=None):
        for line in (text.split('\n') if kind != 'G' else [text]):
            self.q.append((kind, line, tag)); self.total += self.W[kind]
    def pick(self, n, room, mem_ok, here, window=40):
        while self.q and self.q[0][0] == 'G' and n >= self.q[0][1]: self.q.pop(0)
        rd, wr, best = set(), set(), None
        for j, (kind, text, tag) in enumerate(self.q[:window]):
            if kind == 'G': break
            I = Ins(text)
            free = not (I.rd & wr or I.wr & (rd | wr) or I.rd & here)
            if free and self.W[kind] <= room and (kind not in 'wv' or mem_ok):
                if self.W[kind] != 1: return j
                if best is None: best = j
            rd |= I.rd; wr |= I.wr
        return best

def run_gemm(C, groups, US, fills=(), bars=None, marks=None, bursts=None, after_tag=None):
    ng = len(groups); bars = bars or {}
    def utag(u): return ('u', id(US), u)
    def tr(n): return groups[n]['tr'](aF + 4 * (n % 4))
    g0 = groups[0]
    C.emit(f"s_waitcnt vmcnt({C.vm.need(utag(g0['u']))})")
    for tb in range(4): C.emit(g0['bread'](g0['b'], tb), ('b', g0['b']))
    for n in range(2):
        for x in tr(n): C.emit(x, ('a', n))
    C.emit(f"s_waitcnt lgkmcnt({C.lg.need(('a', 0))})")
    lazy = []
    for n, g in enumerate(groups):
        if marks and n in marks: stamp(C, marks[n])
        if after_tag and n in after_tag: assert C.vm.tag[after_tag[n]] <= C.vm.tag[utag(groups[n + 1]['u'])]
        gaps = [[], [], [], []]
        if n + 2 < ng: gaps[0] += [(x, ('a', n + 2)) for x in tr(n + 2)]
        item = None
        if US.remaining() > 0:
            if US.pos // 4 <= g['u'] + 5: item = US.next()
        elif US.after: item = US.after.pop(0)
        post = []
        if item:
            pre, d, post, tag = item
            gaps[1] = [(d, tag)]
            if pre:
                due = lazy + pre; lazy = []
                for x in due[:-1]: C.emit(x)
                gaps[0] = [(due[-1], None)] + gaps[0]
        if lazy and not (gaps[0] and gaps[0][0][0].startswith('s_')): gaps[0] = [(lazy.pop(0), None)] + gaps[0]
        lazy += post
        room = [0, OPT['room1'] if item else 2, 2 - len(g['breads']), 2]
        burst = bursts.get(n) if bursts else None
        if n in bars:
            assert not g['breads']
            gaps[2] = [("s_barrier", None)]; room[2] = 0
        elif item and US.remaining() > 0 and not g['breads'] and not burst and US.pos < (g['u'] + 5) * 4 + n % 4 + 1:
            pre, d, post, tag = US.next()
            gaps[2] = [(x, None) for x in (lazy + pre + ["s_nop 0"] if pre else [])] + [(d, tag)]
            lazy = (lazy if not pre else []) + post; room[2] = 0
        elif burst:
            assert not g['breads'] and not lazy and US.pos % 4 == 0
            for x, _ in burst:
                for F in fills: assert not any(Ins(x).rd & Ins(y).wr for k_, y, _t in F.q if k_ != 'G' and F.lo <= n), ("burst before its data", n, x)
            gaps[2] = list(burst); room[2] = 0
        else:
            if lazy: gaps[2].append((lazy.pop(0), None))
            for b in g['breads']: gaps[2].append((g['bread'](*b), ('b', b[0])))
        for F in fills:
            if not (F.lo <= n): continue
            quota = F.total * min(n + 1 - F.lo, F.hi - F.lo) / (F.hi - F.lo)
            for k in (1, 2, 3):
                here = set()
                while F.q and F.done < quota:
                    empty = not any(not x.startswith('s_') for x, _ in gaps[k])
                    j = F.pick(n, room[k], empty and k != 3, here)
                    if j is None: break
                    kind, text, tag = F.q.pop(j)
                    here |= Ins(text).wr
                    gaps[k].append((text, tag)); room[k] -= F.W[kind]; F.done += F.W[kind]
            if n + 1 == F.hi and F.q and n + 1 < ng:
                print(f"; filler overflow at group {n}: {len(F.q)} left")
                gaps[3] += [(x, tag) for k_, x, tag in F.q if k_ != 'G']; F.q = []
        for tb in range(4):
            C.emit(mfma(g['acc'][tb], ar(aF + 4 * (n % 4)), ar(aB + 16 * g['bbuf'] + 4 * tb), "0" if g['first'] else g['acc'][tb]))
            late = []
            if tb == 3 and n + 1 < ng:
                tags = [('a', n + 1)]
                if groups[n + 1]['b'] != g['b']: tags.append(('b', groups[n + 1]['b']))
                w = f"lgkmcnt({min(C.lg.need(x) for x in tags)})"
                if n + 3 < ng and groups[n + 3]['u'] != groups[n + 2]['u']:
                    w = f"vmcnt({C.vm.need(utag(groups[n + 3]['u']))}) " + w
                C.emit("s_waitcnt " + w)
            if tb == 1 and n in bars and bars[n] is not None:
                C.emit(f"s_waitcnt lgkmcnt({C.lg.need(bars[n])})")
            for x, tag in gaps[tb]: C.emit(x, tag)
    for x in lazy: C.emit(x)

def front_groups(name, u0, accf, nxt):
    G = GEMM[name]; nk = G['nk']
    addr, uoff = (vANAT, 512) if G['nat'] else (vAACC, 2048)
    par = (u0 // 2) % 2
    def bread(bs, tb):
        return f"ds_read_b128 {ar(aB + 16 * bs[2] + 4 * tb)}, v{vLANE16} offset:{LDS_A + (bs[1] * 4 + tb) * 1024}"
    groups = []
    for s in range(nk):
        for nb in range(8):
            u = u0 + 2 * s + nb // 4
            def tr(b, u=u, nb=nb):
                o = (u % 6) * 4096
                return [f"ds_read_b64_tr_b16 {ar(b, 2)}, v{addr + nb % 4} offset:{o}", f"ds_read_b64_tr_b16 {ar(b + 2, 2)}, v{addr + nb % 4} offset:{o + uoff}"]
            nb_key = (name, s + 1, (par + s + 1) % 2) if s + 1 < nk else ((nxt, 0, (par + s + 1) % 2) if nxt else None)
            groups.append(dict(u=u, b=(name, s, (par + s) % 2), bbuf=(par + s) % 2, acc=[accf(nb, tb) for tb in range(4)], first=s == 0,
                               breads=[(nb_key, nb - 1)] if (1 <= nb <= 4 and nb_key) else [], tr=tr, bread=bread))
    return groups

def o_groups():
    def bread(bs, tb): return f"ds_read_b128 {ar(aB2 + 16 * bs[2] + 4 * tb)}, v{vOB} offset:{(bs[1] * 4 + tb) * 1024}"
    steps = [(s, (0, 1)) for s in range(12)] + [(s, (0,)) for s in range(12, 16)] + [(s, (1,)) for s in range(12, 16)]
    groups = []; u = 0
    for k, (s, hs) in enumerate(steps):
        nxt = (k + 1, steps[k + 1][0], (k + 1) % 2) if k + 1 < len(steps) else None
        for idx, (h, b4) in enumerate((h, b4) for h in hs for b4 in range(4)):
            uu = u + idx // 4
            def tr(b, uu=uu, b4=b4):
                q = uu % 6
                addr, o = (vAACC, q * 4096) if q < 4 else (vANAT, (5 - q) * 16384)
                return [f"ds_read_b64_tr_b16 {ar(b, 2)}, v{addr + b4} offset:{o}", f"ds_read_b64_tr_b16 {ar(b + 2, 2)}, v{addr + b4} offset:{o + 2048}"]
            j = idx - 1 if len(hs) == 2 else idx
            groups.append(dict(u=uu, b=(k, s, k % 2), bbuf=k % 2 + (aB2 - aB) // 16, acc=[xacc(4 * h + b4, tb) for tb in range(4)], first=s == 0,
                               breads=[(nxt, j)] if (nxt and 0 <= j < 4) else [], tr=tr, bread=bread))
        u += len(hs)
    return groups

def xacc(nb, tb): return vr(vX + (nb * 4 + tb) * 4)

def pack_store(F, a, base_ops):
    for x in base_ops: F.add('s', x)
    for tb in range(4):
        lo = vX + ((2 * a) * 4 + tb) * 4; hi = lo + 16
        F.add('p', f"v_cvt_pk_bf16_f32 v{lo}, v{lo}, v{lo+1}\nv_cvt_pk_bf16_f32 v{lo+1}, v{lo+2}, v{lo+3}\n"
                   f"v_cvt_pk_bf16_f32 v{lo+2}, v{hi}, v{hi+1}\nv_cvt_pk_bf16_f32 v{lo+3}, v{hi+2}, v{hi+3}")
        F.add('v', f"buffer_store_dwordx4 {vr(lo)}, v{vLANE16}, {srd(S_WS)}, s{sST} offen offset:{tb * 1024}" + (" sc1" if OPT['fused'] else ""))

def flush(C, F):
    for kind, text, tag in F.q: C.emit(text, tag)
    F.q = []

def kread(buf, j, off): return [f"ds_read_b128 {buf}, v{vKA + j} offset:{off}"]
def vread(b, db, off):
    return [f"ds_read_b64_tr_b16 {ar(b, 2)}, v{vVA + db} offset:{off}", f"ds_read_b64_tr_b16 {ar(b + 2, 2)}, v{vVA + db} offset:{off + 4096}"]
def kdma(i): return f"buffer_load_dwordx4 v{vKD + i}, {srd(S_K)}, s{sKOFF} offen offset:{i * 1024} lds"
def vdma(i): return f"buffer_load_dwordx4 v{vVD + i % 2}, {srd(S_V)}, s{sVOFF} offen offset:{i * 1024} lds"
def adv(s): return [f"s_add_u32 s{s}, s{s}, 16384", f"s_and_b32 s{s}, s{s}, 0x7ffff"]
def tile_dma(which, slot):
    if which == 'k': return [([f"s_add_u32 m0, s{sKM0}, {slot * 16384}"] if i == 0 else [], kdma(i), adv(sKOFF) if i == 3 else [], None) for i in range(4)]
    return [([f"s_add_u32 m0, s{sVM0}, {slot * 16384}"] if i == 0 else [], vdma(i), adv(sVOFF) if i == 3 else [], None) for i in range(4)]

def group_reads(n, koff, voff):
    b = aF + 4 * (n % 4)
    if n < 8: return kread(ar(b), n % 4, koff + (n // 4) * 4096)
    return vread(b, n - 8, voff)
def qk_mfma(n, qb, S, A=None, zero=False):
    kb, j = n // 4, n % 4
    d = vr(S + (kb * 4 + qb) * 4)
    return mfma(d, A or ar(aF + 4 * (n % 4)), vr(vQ + (qb * 4 + j) * 4), d if j else ("0" if zero else vr(vNM + 4 * qb)))
def pv_mfma(n, qb, P, zero=False):
    d = ar(aO + ((n - 8) * 4 + qb) * 4)
    return mfma(d, ar(aF + 4 * (n % 4)), vr(P + 4 * qb), "0" if zero else d)
def sum_mfma(qb, P, zero=False):
    d = ar(aL + 4 * qb)
    return mfma(d, ar(aONE), vr(P + 4 * qb), "0" if zero else d)

def step(C, par, koff, voff, look, dmas, sync=None, tail=(), qk=True, pv=True, zero=False, extra=None, h6=()):
    Sc, Sn, Pc, Pp = vS[par], vS[1 - par], vP[par], vP[1 - par]
    extra = extra or {}
    def ex(e):
        x = Sc + (((e // 4) % 2) * 4 + e // 8) * 4 + e % 4
        return f"v_exp_f32 v{x}, v{x}"
    def cv(k):
        x = Sc + (((k // 2) % 2) * 4 + k // 4) * 4 + 2 * (k % 2)
        return f"v_cvt_pk_bf16_f32 v{Pc + k}, v{x}, v{x + 1}"
    ns = [n for n in range(16) if (qk if n < 8 else pv)]
    per = 32 // len(ns)
    dmas = list(dmas); scal = []
    e = 0; c = 0
    for idx, n in enumerate(ns):
        lastg = idx == len(ns) - 1
        rd = group_reads(ns[idx + 2], koff, voff) if idx + 2 < len(ns) else []
        cs = []
        while c < e // 2: cs.append(cv(c)); c += 1
        es = [ex(e + k) for k in range(per)]; e += per
        g = [[], [], [], []]; tags = [None] * 4
        w = None
        if not lastg:
            w = f"s_waitcnt lgkmcnt({len(rd)})"
            if idx == len(ns) - 2 and sync is not None: w = 'SYNC'
        xs = list(extra.get(n, []))
        if per == 4:
            if lastg:
                g = [(["s_barrier"] if sync is not None else []), look[0] + [es[0]], [es[1]] + cs, [es[2], es[3]] + xs]
            else:
                g = [rd + cs[:1], [es[0]] + cs[1:], [es[1]] + xs, [w, es[2], es[3]]]
                if dmas:
                    pre, d, post, tag = dmas.pop(0)
                    g[0] = scal + pre + g[0]; scal = list(post); g[1] = [d]; tags[1] = tag; g[2] = [es[0]] + cs[1:] + [es[1]] + xs
        elif lastg:
            g[0] = ["s_barrier"] if sync is not None else []
            g[1] = look[0] + (cs if len(look[0]) == 1 else []); g[2] = [es[0]]; g[3] = [es[1]]
            if len(look[0]) == 2: c -= len(cs)
            g[0] += xs if sync is None else []; g[3] += xs if sync is not None else []
        elif dmas:
            pre, d, post, tag = dmas.pop(0)
            one = len(rd) < 2
            g[0] = scal + pre + rd + (cs if one else []); scal = list(post)
            g[1] = [d] + ([] if one else cs); tags[1] = tag; g[2] = [es[0]] + xs; g[3] = [w, es[1]]
        elif len(rd) == 2:
            g = [rd, scal[:1] + [es[0]], cs + xs, [w, es[1]]]; scal = scal[1:]
        else:
            g = [(list(h6) if n == 14 else []) + rd + cs, scal[:1] + [es[0]], xs, [w, es[1]]]; scal = scal[1:]
        for qb in range(4):
            C.emit(qk_mfma(n, qb, Sn) if n < 8 else pv_mfma(n, qb, Pp, zero))
            for x in g[qb]:
                if x == 'SYNC': x = f"s_waitcnt vmcnt({sync() if callable(sync) else sync}) lgkmcnt(0)"
                C.emit(x, tags[qb] if x.startswith('buffer_') else None)
    assert not dmas
    cs = [cv(k) for k in range(c, 16)]
    wl = f"s_waitcnt lgkmcnt({len(look[1])})"
    if not pv:
        for x in scal + look[1] + cs + [wl]: C.emit(x)
        return
    one = len(look[1]) == 1
    g = [look[1] + (cs[:1] if one else []), cs[1:] if one else cs, scal, [wl]]
    if tail: g[1] = [tail[0]] + g[1]; g[2] = g[2] + [tail[1]]; g[3] = g[3] + [tail[2]]
    for qb in range(4):
        C.emit(sum_mfma(qb, Pp, zero))
        for x in g[qb]: C.emit(x)

def iteration(C, k, tail=(), hook=()):
    slot = (k + 1) % 3
    ks, nx, ds = slot * 16384, ((slot + 1) % 3) * 16384, (slot + 2) % 3
    def st(j): return [([], f"buffer_store_dwordx4 {vr(vE)}, v{vLANE16}, {srd(S_DS)}, s{sDOFF} offen offset:{(j - 1) * 1024}" + (" sc1" if OPT['fused'] else ""),
                        [f"s_add_u32 s{sDOFF}, s{sDOFF}, 4096"] if j == 4 else [], None)] if 1 <= j <= 4 else []
    def rd(j): return [f"ds_read_b128 {vr(vE)}, v{vDA} offset:{j * 1024}"] if j <= 3 else ([f"v_add_u32 v{vDA}, 16384, v{vDA}"] if j == 4 else list(hook))
    step(C, 0, ks, ks, [group_reads(0, ks + 8192, 0), group_reads(1, ks + 8192, 0)], tile_dma('k', ds) + st(2 * k), h6=rd(2 * k))
    step(C, 1, ks + 8192, ks + 8192, [group_reads(0, nx, 0), group_reads(1, nx, 0)], tile_dma('v', ds) + st(2 * k + 1),
         sync=(9, 11, 10)[k], tail=tail, h6=rd(2 * k + 1))

def xlane(C, op, m, t):
    C.emit(f"v_mov_b32 v{t}, v{m}\nv_permlane32_swap_b32 v{m}, v{t}\n{op} v{m}, v{m}, v{t}")
    C.emit(f"v_mov_b32 v{t}, v{m}\nv_permlane16_swap_b32 v{m}, v{t}\n{op} v{m}, v{m}, v{t}")

def stamp(C, k):
    if OPT['stamps'] and k in (11, 12, 13): C.A(f"s_memrealtime s[100:101]\ns_waitcnt lgkmcnt(0)\nv_writelane_b32 v55, s100, {k + 8}")
    if OPT['stamps']: C.A(f"s_memtime s[100:101]\ns_waitcnt lgkmcnt(0)\nv_writelane_b32 v55, s100, {k}")

def att_offsets(C):
    E = C.emit
    E(f"s_and_b32 s{sT2}, s{sRB}, {OPT['kvst']}\ns_lshl_b32 s{sT2}, s{sT2}, {14 + OPT.get('kvsh', 0)}\ns_and_b32 s{sT3}, s{sW}, 1\ns_lshl_b32 s{sT3}, s{sT3}, 12\ns_add_u32 s{sKV0}, s{sT2}, s{sT3}")
    E(f"s_lshr_b32 s{sT1}, s{sW}, 1\ns_add_u32 s{sT1}, s{sT1}, 1\ns_lshl_b32 s{sT1}, s{sT1}, 13\ns_add_u32 s{sKOFF}, s{sKV0}, s{sT1}")
    E(f"s_and_b32 s{sKOFF}, s{sKOFF}, 0x7ffff\ns_mov_b32 s{sVOFF}, s{sKOFF}")

def first_pieces():
    L = [([f"s_mov_b32 m0, s{sKVM}"] if i == 0 else [], f"buffer_load_dwordx4 v{vD0 + i}, {srd(S_KV)}, s{sKV0} offen offset:{i * 1024} lds", [], 'kv0') for i in range(4)]
    L += [([f"s_sub_u32 m0, s{sKM0}, {LDS_K - LDS_K1}"] if i == 0 else [], kdma(i), adv(sKOFF) if i == 3 else [], 'kv0') for i in range(4)]
    return L

def emit_dmas(C, L, nop=True):
    for pre, d, post, tag in L:
        for x in pre: C.emit(x)
        if pre and nop: C.emit("s_nop 0")
        C.emit(d, tag)
        for x in post: C.emit(x)

vG = 64

def silu(add, d, tmp):
    for e in range(8): add('p', f"v_mul_f32 v{tmp + e}, {f32(-LOG2E)}, v{d + e}")
    for e in range(8): add('t', f"v_exp_f32 v{tmp + e}, v{tmp + e}")
    for e in range(8): add('p', f"v_add_f32 v{tmp + e}, 1.0, v{tmp + e}")
    for e in range(8): add('t', f"v_rcp_f32 v{tmp + e}, v{tmp + e}")
    for e in range(8): add('p', f"v_mul_f32 v{d + e}, v{d + e}, v{tmp + e}")

def slice_srd(C, SP, sj):
    C.emit(f"s_lshl_b32 s{sT1}, s{sRB}, 2\ns_add_u32 s{sT1}, s{sT1}, s{sW}\ns_lshl_b32 s{sT1}, s{sT1}, 3\ns_add_u32 s{sT1}, s{sT1}, s{sj}\ns_lshl_b32 s{sT1}, s{sT1}, 11")
    C.emit(f"s_add_u32 s{SP}, s86, s{sT1}\ns_addc_u32 s{SP + 1}, s87, 0\ns_sub_u32 s{SP + 2}, {32 << 20}, s{sT1}\ns_mov_b32 s{SP + 3}, 0x20000")

def tail(C):
    E = C.emit; A = C.A; t = vT
    SF, SP, SO = S_K, S_V, S_WQ
    vTOK, vPA, vPL, vXA, vXD, vD, vSs, vU = t[0], t[2], t[3], t[4], 112, 192, 128, 96
    E(f"s_lshl_b32 s{sT1}, s{sRB}, 10\ns_add_u32 s{sT1}, s{sT1}, {32 << 20}\ns_add_u32 s{SF}, s86, s{sT1}\ns_addc_u32 s{SF + 1}, s87, 0\ns_mov_b32 s{SF + 2}, 1024\ns_mov_b32 s{SF + 3}, 0x20000")
    E(f"s_lshl_b32 s{sT1}, s{sRB}, 16\ns_add_u32 s{SO}, s82, s{sT1}\ns_addc_u32 s{SO + 1}, s83, 0\ns_mov_b32 s{SO + 2}, 65536\ns_mov_b32 s{SO + 3}, 0x20000")
    E(f"s_lshl_b32 s{sT2}, s{sW}, 8\nv_and_b32 v{vPA}, 15, v0\nv_lshl_add_u32 v{vPA}, v{vPA}, 2, s{sT2}")
    poll = f"buffer_load_dword v{vPL}, v{vPA}, {srd(SF)}, 0 offen sc1"
    E(poll)
    E(f"v_readfirstlane_b32 s{sTOK}, v{vTOK}\ns_mov_b32 s{sCNT}, 0\ns_mov_b32 s{sGONE}, 0\ns_mov_b32 s{sJ}, s{sG}\ns_lshl_b32 s{sREADY}, 1, s{sG}\ns_mov_b32 s{sTODO}, -1")
    E(f"s_cmp_lg_u32 s{sTOK}, 0\ns_cbranch_scc1 L_havetok")
    E(f"v_mov_b32 v{t[4]}, s{sCAND}\nv_mov_b32 v{t[5]}, 0\nglobal_atomic_cmpswap v{t[6]}, v{t[5]}, v[{t[4]}:{t[5]}], s[84:85] sc0 sc1\ns_waitcnt vmcnt(0)")
    E(f"v_readfirstlane_b32 s{sTOK}, v{t[6]}\ns_nop 0\ns_cmp_eq_u32 s{sTOK}, 0\ns_cselect_b32 s{sTOK}, s{sCAND}, s{sTOK}")
    A("L_havetok:")
    if OPT['dropflag'] >= 0: E(f"s_cmp_eq_u32 s{sG}, {OPT['dropflag']}\ns_cbranch_scc0 L_sendflag\ns_mov_b32 s{sT1}, 0\nL_late:\ns_sleep 127\ns_add_u32 s{sT1}, s{sT1}, 1\ns_cmp_lt_u32 s{sT1}, 200\ns_cbranch_scc1 L_late\nL_sendflag:")
    E("s_waitcnt vmcnt(0)\ns_barrier")
    stamp(C, 12)
    E(f"s_cmp_eq_u32 s{sW}, 0\ns_cbranch_scc0 L_slice")
    E(f"s_lshl_b32 s{sT1}, s{sG}, 2\nv_lshlrev_b32 v{t[5]}, 8, v0\nv_mov_b32 v{t[6]}, s{sTOK}\nbuffer_store_dword v{t[6]}, v{t[5]}, {srd(SF)}, s{sT1} offen sc1")
    A("L_slice:")
    slice_srd(C, SP, sJ)
    E(f"s_and_b32 s{sT1}, s{sJ}, 1\ns_lshl_b32 s{sT1}, s{sT1}, 15\ns_lshr_b32 s{sT2}, s{sJ}, 1\ns_lshl_b32 s{sT2}, s{sT2}, 6\ns_add_u32 s{sT1}, s{sT1}, s{sT2}\ns_lshl_b32 s{sT2}, s{sW}, 8\ns_add_u32 s{sT1}, s{sT1}, s{sT2}")
    E(f"v_and_b32 v{vXA}, 15, v0\nv_lshrrev_b32 v{vXA + 1}, 4, v0\nv_lshlrev_b32 v{vXA}, 10, v{vXA}\nv_lshl_add_u32 v{vXA}, v{vXA + 1}, 3, v{vXA}\nv_add_u32 v{vXA}, s{sT1}, v{vXA}\nv_add_u32 v{vXA + 1}, 16384, v{vXA}")
    for f in range(2):
        for h in range(2): E(f"buffer_load_dwordx2 {vr(vXD + 4 * f + 2 * h, 2)}, v{vXA + f}, {srd(S_X)}, 0 offen offset:{32 * h}")
    E(f"s_mov_b32 s{sLOADED}, 0")
    A("L_look:")
    E(f"v_cmp_eq_u32 vcc, s{sTOK}, v{vPL}\ns_and_b32 s{sRAW}, vcc_lo, 0xff\ns_lshr_b32 s{sAB}, vcc_lo, 8\ns_and_b32 s{sAB}, s{sAB}, 0xff\ns_or_b32 s{sREADY}, s{sREADY}, s{sRAW}")
    E(f"s_andn2_b32 s{sT3}, s{sREADY}, s{sLOADED}\ns_mov_b32 s{sLOADED}, s{sREADY}")
    for k in range(8):
        E(f"s_bitcmp1_b32 s{sT3}, {k}\ns_cbranch_scc0 L_skip{k}\ns_mov_b32 s{sT1}, {k << 21}\ns_mov_b32 s{sT2}, {(16 << 20) + (k << 21)}")
        for base, so in ((vSs, sT2), (vD, sT1)):
            if base == vD: E(f"s_cmp_lg_u32 s{sEARLY}, 0\ns_cbranch_scc1 L_skip{k}")
            for f in range(2): E(f"buffer_load_dwordx4 {vr(base + (f * 8 + k) * 4)}, v{vLANE16}, {srd(SP)}, s{so} offen offset:{f * 1024} sc1")
        A(f"L_skip{k}:")
    E(f"s_cmp_eq_u32 s{sRAW}, 0xff\ns_cbranch_scc1 L_sum")
    E(f"s_cmp_lg_u32 s{sT3}, 0\ns_cbranch_scc1 L_poll\ns_bitcmp1_b32 s{sRAW}, s{sG}\ns_cbranch_scc0 L_poll\ns_cmp_lg_u32 s{sGONE}, 0\ns_cbranch_scc1 L_fin\ns_sleep 4\ns_add_u32 s{sCNT}, s{sCNT}, 1\ns_cmp_lt_u32 s{sCNT}, {OPT['limit']}\ns_cbranch_scc1 L_poll")
    E(f"s_lshl_b32 s{sT1}, s{sW}, 8\ns_lshl_b32 s{sT2}, s{sG}, 2\ns_add_u32 s{sT1}, s{sT1}, s{sT2}\ns_add_u32 s{sT1}, s{sT1}, 32\nv_lshlrev_b32 v{t[6]}, 10, v0\nv_mov_b32 v{t[7]}, s{sTOK}")
    E(f"buffer_store_dword v{t[7]}, v{t[6]}, {srd(SF)}, s{sT1} offen sc1\ns_mov_b32 s{sGONE}, 1\ns_waitcnt vmcnt(0)")
    A("L_poll:")
    E(poll + "\ns_waitcnt vmcnt(0)\ns_branch L_look")
    A("L_sum:")
    E("s_waitcnt vmcnt(0)")
    stamp(C, 13)
    def total(base, d):
        for k in range(8):
            for r in range(4):
                a = d + 2 * r if k == 0 else vU + 2 * r
                E(f"v_lshlrev_b32 v{a}, 16, v{base + 4 * k + r}\nv_and_b32 v{a + 1}, 0xffff0000, v{base + 4 * k + r}")
            for r in (range(4) if k else ()): E(f"v_pk_add_f32 v[{d + 2 * r}:{d + 2 * r + 1}], v[{d + 2 * r}:{d + 2 * r + 1}], v[{vU + 2 * r}:{vU + 2 * r + 1}]")
    E(f"s_cmp_lg_u32 s{sEARLY}, 0\ns_cbranch_scc1 L_gated")
    for f in range(2):
        total(vD + 32 * f, vG + 8 * f); silu(lambda k, x: E(x), vG + 8 * f, vU)
    A("L_gated:")
    for f in range(2):
        d, sm = vG + 8 * f, vG + 16 + 8 * f
        total(vSs + 32 * f, sm)
        for r in range(4):
            x = vXD + 4 * f + r; u = vU + 2 * r
            E(f"v_lshlrev_b32 v{u}, 16, v{x}\nv_and_b32 v{u + 1}, 0xffff0000, v{x}")
            E(f"v_pk_fma_f32 v[{u}:{u + 1}], v[{sm + 2 * r}:{sm + 2 * r + 1}], v[{d + 2 * r}:{d + 2 * r + 1}], v[{u}:{u + 1}]\nv_cvt_pk_bf16_f32 v{x}, v{u}, v{u + 1}")
        for h in range(2): E(f"buffer_store_dwordx2 {vr(vXD + 4 * f + 2 * h, 2)}, v{vXA + f}, {srd(SO)}, 0 offen offset:{32 * h}")
    E(f"s_lshl_b32 s{sT1}, 1, s{sJ}\ns_andn2_b32 s{sTODO}, s{sTODO}, s{sT1}\ns_and_b32 s{sT1}, s{sTODO}, s{sAB}\ns_cbranch_scc0 L_fin")
    E(f"s_ff1_i32_b32 s{sJ}, s{sT1}\ns_mov_b32 s{sEARLY}, 0\ns_waitcnt vmcnt(0)\ns_branch L_slice")
    A("L_fin:")

def main_kernel():
    C = Ctx(); E = C.emit; A = C.A
    t = vT
    A(f"{NAME}_kernel:" if OPT['fused'] else "main_kernel:")
    E("s_cmp_ge_u32 s2, 256\ns_cbranch_scc1 L_end")
    if OPT['stamps']: E("s_memrealtime s[96:97]\ns_memtime s[98:99]")
    E("s_load_dwordx16 s[64:79], s[0:1], 0\ns_load_dwordx4 s[80:83], s[0:1], 64\ns_load_dwordx4 s[84:87], s[0:1], 80\ns_memrealtime s[60:61]")
    E(f"v_lshrrev_b32 v{t[0]}, 6, v0\nv_and_b32 v0, 63, v0\nv_readfirstlane_b32 s{sW}, v{t[0]}")
    E(f"s_and_b32 s{sG}, s2, 7\ns_lshr_b32 s{sRB}, s2, 3\ns_and_b32 s{sROT}, s{sRB}, 15\ns_and_b32 s{sODD}, s2, 1")
    E(f"v_and_b32 v{t[0]}, 15, v0\nv_lshrrev_b32 v{t[1]}, 4, v0\ns_lshl_b32 s{sT2}, s{sW}, 14")
    E(f"v_lshlrev_b32 v{t[2]}, 10, v{t[0]}\nv_lshl_add_u32 v{t[2]}, v{t[1]}, 4, v{t[2]}\nv_add_u32 v{t[2]}, s{sT2}, v{t[2]}")
    E(f"s_lshl_b32 s8, s{sROT}, 6\ns_lshl_b32 s{sT1}, s{sRB}, 16\nv_lshlrev_b32 v{vLANE16}, 4, v0")
    for jj in range(1, 16): E(f"s_add_u32 s{8 + jj}, s{7 + jj}, 64\ns_and_b32 s{8 + jj}, s{8 + jj}, 1023")
    E("s_waitcnt lgkmcnt(0)")
    def mk(sr, p, size):
        E(f"s_add_u32 s{sr}, s{p}, s{sT1}\ns_addc_u32 s{sr+1}, s{p+1}, 0\ns_sub_u32 s{sr+2}, {size}, s{sT1}\ns_mov_b32 s{sr+3}, 0x20000")
    mk(S_X, 64, 2048 * 1024)
    for jj in range(16):
        E(f"buffer_load_dwordx4 {vr(vX + 4 * jj)}, v{t[2]}, {srd(S_X)}, s{8 + jj} offen", ('x', jj))
    E(f"s_mul_i32 s{sT1}, s{sRB}, 37\ns_lshr_b32 s{sT1}, s{sT1}, 8\ns_mul_i32 s{sT1}, s{sT1}, 7\ns_sub_u32 s{sROT7}, s{sRB}, s{sT1}")
    E(f"s_mul_i32 s{sT1}, s{sG}, 448\ns_lshl_b32 s{sT2}, s{sW}, 7\ns_add_u32 s{sT1}, s{sT1}, s{sT2}\ns_lshl_b32 s{sT2}, s{sODD}, 6\ns_sub_u32 s{sT1}, s{sT1}, s{sT2}")
    mk(S_WG, 76, 512 * 3584); mk(S_WU, 78, 512 * 3584)
    E(f"s_lshl_b32 s{sT1}, s{sG}, 10\ns_lshl_b32 s{sT3}, s{sW}, 8\ns_add_u32 s{sT1}, s{sT1}, s{sT3}"); mk(S_WQ, 70, 512 * 8192)
    E(f"s_lshl_b32 s{sT1}, s{sG}, 19\ns_add_u32 s{sT1}, s{sT1}, s{sT3}"); mk(S_WO, 72, 4096 * 1024)
    E(f"s_mul_i32 s{sT1}, s{sG}, {224 * 1024}\ns_add_u32 s{sT1}, s{sT1}, s{sT3}"); mk(S_WD, 80, 1792 * 1024)
    E(f"s_lshl_b32 s{sT1}, s{sG}, 19"); mk(S_K, 66, 8 * 524288); mk(S_V, 68, 8 * 524288)
    E(f"s_mov_b32 s{S_K+2}, 524288\ns_mov_b32 s{S_V+2}, 524288")
    E(f"s_lshl_b32 s{sT1}, s{sG}, 5\ns_add_u32 s{sT1}, s{sT1}, s{sRB}\ns_lshl_b32 s{sT1}, s{sT1}, 2\ns_add_u32 s{sT1}, s{sT1}, s{sW}\ns_lshl_b32 s{sT1}, s{sT1}, 14")
    mk(S_WS, 86, 32 << 20)
    E(f"s_or_b32 s{sCAND}, s60, 1")
    E(f"s_mul_i32 s{sRING}, s{sW}, {RING}\ns_add_u32 s{sRING}, s{sRING}, {LDS_R}")
    for n in ('gu', 'q', 'd'):
        E(f"s_mul_i32 s{sOFF[n]}, s{sROT7 if n == 'd' else sROT}, {32 * GEMM[n]['stride']}")
    for k in range(4): E(f"s_add_u32 s{sOB + k}, s{sROT}, {k}\ns_and_b32 s{sOB + k}, s{sOB + k}, 3\ns_lshl_b32 s{sOB + k}, s{sOB + k}, 17")
    E(f"v_lshrrev_b32 v{t[3]}, 3, v0\nv_and_b32 v{t[4]}, 7, v0")
    E(f"v_and_b32 v{t[5]}, 1, v{t[1]}\nv_lshlrev_b32 v{t[5]}, 1, v{t[5]}\nv_xor_b32 v{t[5]}, v{t[5]}, v{t[4]}")
    E(f"v_lshlrev_b32 v{t[6]}, 1, v{t[1]}\nv_xor_b32 v{t[6]}, v{t[6]}, v{t[4]}")
    E(f"s_mul_i32 s{sT1}, s{sODD}, 3\ns_add_u32 s{sT1}, s{sT1}, s{sW}\ns_cmp_eq_u32 s{sT1}, 3\ns_cselect_b32 s{sT2}, 4, 0\ns_lshl_b32 s{sT3}, s{sODD}, 2")
    for n in ('gu', 'q', 'd'):
        st = GEMM[n]['stride']
        E(f"s_mov_b32 s{sT1}, {st}\nv_mul_lo_u32 v{t[7]}, s{sT1}, v{t[3]}")
        for i in range(4):
            d = vVO[n] + i
            if GEMM[n]['nat']: E(f"v_xor_b32 v{d}, {4 * (i % 2)}, v{t[5]}")
            else: E(f"v_mov_b32 v{d}, v{t[6]}")
            if n == 'gu': E(f"v_xor_b32 v{t[2]}, s{sT3}, v{d}\nv_and_b32 v{t[2]}, s{sT2}, v{t[2]}\nv_lshlrev_b32 v{t[2]}, 28, v{t[2]}")
            E(f"v_lshl_add_u32 v{d}, v{d}, 4, v{t[7]}\nv_add_u32 v{d}, {i * (8 * st - 1024)}, v{d}")
            if n == 'gu': E(f"v_add_u32 v{d}, v{d}, v{t[2]}")
    US = UnitStream(front_units(), lambda u: f"s_add_u32 m0, s{sRING}, {(u % 6) * 4096}")
    E(f"v_bfe_u32 v{t[2]}, v0, 2, 2\nv_and_b32 v{t[3]}, 3, v0")
    E(f"v_lshrrev_b32 v{t[4]}, 1, v{t[2]}\nv_and_b32 v{t[5]}, 1, v{t[1]}\nv_lshl_add_u32 v{t[4]}, v{t[5]}, 1, v{t[4]}")
    E(f"v_lshlrev_b32 v{t[4]}, 5, v{t[4]}\nv_lshl_add_u32 v{t[4]}, v{t[3]}, 3, v{t[4]}\nv_lshl_add_u32 v{t[4]}, v{t[2]}, 7, v{t[4]}\nv_add_u32 v{t[4]}, s{sRING}, v{t[4]}")
    E(f"v_lshl_add_u32 v{vANAT}, v{t[1]}, 10, v{t[4]}\nv_lshl_add_u32 v{vAACC}, v{t[1]}, 9, v{t[4]}")
    for b in range(1, 4):
        E(f"v_xor_b32 v{vANAT + b}, {b << 5}, v{vANAT}\nv_xor_b32 v{vAACC + b}, {b << 5}, v{vAACC}")
    E(f"v_lshrrev_b32 v{t[4]}, 1, v{t[1]}\nv_lshl_add_u32 v{t[4]}, v{t[5]}, 1, v{t[4]}")
    E(f"v_xor_b32 v{t[4]}, v{t[4]}, v{t[0]}\nv_lshlrev_b32 v{t[4]}, 4, v{t[4]}\nv_lshl_add_u32 v{t[4]}, v{t[0]}, 8, v{t[4]}\nv_add_u32 v{vKA}, {LDS_K0}, v{t[4]}")
    for j in range(1, 4): E(f"v_xor_b32 v{vKA + j}, {j << 6}, v{vKA}")
    E(f"v_lshl_add_u32 v{t[4]}, v{t[5]}, 2, v{t[2]}\nv_lshlrev_b32 v{t[4]}, 5, v{t[4]}\nv_lshl_add_u32 v{t[4]}, v{t[3]}, 3, v{t[4]}")
    E(f"v_lshl_add_u32 v{t[6]}, v{t[1]}, 2, v{t[2]}\nv_lshl_add_u32 v{t[4]}, v{t[6]}, 8, v{t[4]}\nv_add_u32 v{vVA}, {LDS_V0}, v{t[4]}")
    for db in range(1, 8): E(f"v_xor_b32 v{vVA + db}, {db << 5}, v{vVA}")
    for i in range(4):
        E(f"v_xor_b32 v{t[4]}, v{t[0]}, v{t[1]}\nv_xor_b32 v{t[4]}, {4 * i}, v{t[4]}\nv_lshlrev_b32 v{t[4]}, 4, v{t[4]}\nv_lshl_add_u32 v{vKD + i}, v{t[1]}, 8, v{t[4]}")
    for i in range(2):
        E(f"v_lshlrev_b32 v{t[4]}, 1, v{t[1]}\nv_xor_b32 v{t[4]}, v{t[4]}, v{t[0]}\nv_xor_b32 v{t[4]}, {8 * i}, v{t[4]}\nv_lshlrev_b32 v{t[4]}, 4, v{t[4]}\nv_lshl_add_u32 v{vVD + i}, v{t[1]}, 8, v{t[4]}")
    E(f"s_lshl_b32 s{sT1}, s{sW}, 12\ns_add_u32 s{sKM0}, s{sT1}, {LDS_K}\ns_add_u32 s{sVM0}, s{sT1}, {LDS_V}")
    E(f"s_cmp_lt_u32 s{sW}, 2\ns_cselect_b64 vcc, -1, 0\ns_cselect_b32 s{S_KV}, s{S_K}, s{S_V}\ns_cselect_b32 s{S_KV+1}, s{S_K+1}, s{S_V+1}")
    E(f"s_cselect_b32 s{sKVM}, 0, {LDS_V0 - LDS_K0}\ns_mov_b32 s{S_KV+2}, 524288\ns_mov_b32 s{S_KV+3}, 0x20000")
    E(f"s_and_b32 s{sT1}, s{sW}, 1\ns_lshl_b32 s{sT1}, s{sT1}, 12\ns_add_u32 s{sT1}, s{sT1}, {LDS_K0}\ns_add_u32 s{sKVM}, s{sKVM}, s{sT1}")
    for i in range(4): E(f"v_cndmask_b32 v{vD0 + i}, v{vVD + i % 2}, v{vKD + i}, vcc")
    att_offsets(C)
    for a in range(2):
        E(f"s_lshl_b32 s{sT1}, s{sW}, 1\ns_add_u32 s{sT1}, s{sT1}, {a}\ns_sub_u32 s{sT3}, s{sT1}, s{sODD}\ns_add_u32 s{sT1}, s{sT3}, 7\ns_sub_u32 s{sT1}, s{sT1}, s{sROT7}")
        E(f"s_cmp_ge_u32 s{sT1}, 7\ns_cselect_b32 s{sT2}, 7, 0\ns_sub_u32 s{sT1}, s{sT1}, s{sT2}\ns_cmp_ge_u32 s{sT3}, 7\ns_cselect_b32 s{sT1}, 7, s{sT1}")
        E(f"s_lshl_b32 s{sT1}, s{sT1}, 12\nv_add_u32 v{vHA + a}, s{sT1}, v{vLANE16}")
    E(f"s_sub_u32 s{sT1}, s{sW}, s{sROT}\ns_and_b32 s{sT1}, s{sT1}, 3\ns_lshl_b32 s{sT1}, s{sT1}, 12\ns_add_u32 s{sT1}, s{sT1}, {LDS_O}")
    E(f"v_add_u32 v{vOA}, s{sT1}, v{vLANE16}\nv_add_u32 v{vOB}, {LDS_O}, v{vLANE16}")
    E(f"s_lshl_b32 s{sM0A}, s{sW}, 14\ns_lshl_b32 s{sM0B}, s{sW}, 12\ns_add_u32 s{sM0B}, s{sM0B}, {LDS_FLAG}")
    E(f"v_mov_b32 v{t[4]}, 0x3f803f80")
    for i in range(4): E(f"v_accvgpr_write_b32 a{aONE + i}, v{t[4]}")
    for i in range(4): E(f"v_mov_b32 v{vMT + i}, 0xff800000")
    E(f"s_mov_b32 s{sREDO}, 0\ns_mov_b32 s{sCQ}, {f32(CQ)}")
    E(f"s_lshl_b32 s{sT1}, s{sRB}, 2\ns_add_u32 s{sT1}, s{sT1}, s{sW}\ns_lshl_b32 s{sT3}, s{sW}, 8")
    E(f"s_lshl_b32 s{sT2}, s{sT1}, 12\nv_lshlrev_b32 v59, 6, v0\nv_add_u32 v59, s{sT2}, v59\nv_subrev_u32 v58, s{sT3}, v59")
    stamp(C, 0)
    m, q = 192, 196
    for jj in range(16):
        E(f"s_waitcnt vmcnt({C.vm.need(('x', jj))})")
        x = vr(vX + 4 * jj)
        E(mfma(vr(m), ar(aONE), x, vr(m) if jj else "0"))
        it = US.next() if jj < OPT['paced'] else None
        if it:
            for p in it[0]: E(p)
        E(mfma(vr(q), x, x, vr(q) if jj else "0"))
        if it:
            E(it[1], it[3])
            for p in it[2]: E(p)
    stamp(C, 1)
    E(f"v_mul_f32 v{m}, {f32(1 / 512)}, v{m}")
    for r in range(1, 4): E(f"v_cmp_eq_u32 vcc, {r}, v{t[3]}\nv_cndmask_b32 v{q}, v{q}, v{q + r}, vcc")
    E(f"v_cmp_eq_u32 vcc, v{t[2]}, v{t[1]}\nv_cndmask_b32 v{q}, 0, v{q}, vcc")
    xlane(C, "v_add_f32", q, q + 1)
    rb16 = lambda x: f"v_cvt_pk_bf16_f32 v{x}, v{x}, v{x}\nv_lshlrev_b32 v{x}, 16, v{x}"
    E(f"v_mul_f32 v{q}, {f32(1 / 512)}, v{q}\nv_fma_f32 v{q}, -v{m}, v{m}, v{q}\nv_max_f32 v{q}, 0, v{q}"); E(rb16(q))
    E(f"v_add_f32 v{q}, {f32(1e-5)}, v{q}"); E(rb16(q))
    E(f"v_sqrt_f32 v{q}, v{q}"); E(rb16(q)); E(rb16(m))
    E(f"v_rcp_f32 v{q}, v{q}\ns_lshl_b32 s{sT1}, s{sW}, 10\nv_mul_f32 v{q}, s{sCQ}, v{q}\nv_mul_f32 v{m}, v{m}, v{q}\nv_add_u32 v{t[4]}, s{sT1}, v{vLANE16}")
    for jj in range(16):
        for r in range(4):
            x = vX + 4 * jj + r; a, b = 206 + 2 * (r % 2), 207 + 2 * (r % 2)
            E(f"v_lshlrev_b32 v{a}, 16, v{x}\nv_and_b32 v{b}, 0xffff0000, v{x}")
            if r % 2:
                for a, xx in ((206, x - 1), (208, x)): E(f"v_pk_fma_f32 v[{a}:{a + 1}], v[{a}:{a + 1}], v[{q}:{q + 1}], v[{m}:{m + 1}] op_sel_hi:[1,0,0] neg_lo:[0,0,1] neg_hi:[0,0,1]")
                for a, xx in ((206, x - 1), (208, x)): E(f"v_cvt_pk_bf16_f32 v{xx}, v{a}, v{a + 1}")
        E(f"ds_write_b128 v{t[4]}, {vr(vX + 4 * jj)} offset:{LDS_A + jj * 4096}")
    E("s_waitcnt lgkmcnt(0)\ns_barrier")
    stamp(C, 2)
    F1 = Fill(128, 128 + 118)
    hw = lambda a, tb: f"ds_write_b128 v{vHA + a}, {vr(vQ + (a * 4 + tb) * 4)} offset:{LDS_A + tb * 1024}"
    for a in range(2):
        for tb in range(4):
            for nb in (2 * a, 2 * a + 1):
                gq, uq = vX + (nb * 4 + tb) * 4, vX + ((nb + 4) * 4 + tb) * 4
                for r in range(4): F1.add('p', f"v_mul_f32 v{gq + r}, {f32(-LOG2E / CQ)}, v{gq + r}")
                for r in range(4): F1.add('t', f"v_exp_f32 v{gq + r}, v{gq + r}")
                for r in range(4): F1.add('p', f"v_fma_f32 v{gq + r}, v{gq + r}, s{sCQ}, s{sCQ}")
                for r in range(4): F1.add('t', f"v_rcp_f32 v{gq + r}, v{gq + r}")
                for r in range(4): F1.add('p', f"v_mul_f32 v{gq + r}, v{gq + r}, v{uq + r}")
                h = vQ + (a * 4 + tb) * 4 + 2 * (nb % 2)
                F1.add('p', f"v_cvt_pk_bf16_f32 v{h}, v{gq}, v{gq + 1}\nv_cvt_pk_bf16_f32 v{h + 1}, v{gq + 2}, v{gq + 3}")
    F2 = Fill(257, 256 + 56)
    for k, (qb, j) in enumerate((qb, j) for qb in range(4) for j in range(4)):
        lo, hi, d = aO + (2 * j * 4 + qb) * 4, aO + ((2 * j + 1) * 4 + qb) * 4, vQ + (qb * 4 + j) * 4
        for hh, src in enumerate((lo, hi)):
            for r in range(4): F2.add('p', f"v_accvgpr_read_b32 v{t[4 * hh + r]}, a{src + r}")
        if k: F2.add('p', prev)
        F2.add('p', f"v_cvt_pk_bf16_f32 v{d}, v{t[0]}, v{t[1]}\nv_cvt_pk_bf16_f32 v{d + 2}, v{t[4]}, v{t[5]}")
        F2.add('p', f"v_cvt_pk_bf16_f32 v{d + 1}, v{t[2]}, v{t[3]}\nv_cvt_pk_bf16_f32 v{d + 3}, v{t[6]}, v{t[7]}")
        prev = f"v_permlane16_swap_b32 v{d}, v{d + 2}\nv_permlane16_swap_b32 v{d + 1}, v{d + 3}"
    F2.add('p', prev)
    bursts = {128 + 71: [(hw(0, tb), 'h') for tb in range(4)], 128 + 119: [(hw(1, tb), 'h') for tb in range(4)]}
    if OPT['kvearly']:
        fp = first_pieces()
        bursts[128 + 127] = [(fp[0][0][0], None), ("s_nop 0", None)] + [(x[1], 'kv0') for x in fp[:4]]
        bursts[256 + 7] = [(fp[4][0][0], None), ("s_nop 0", None)] + [(x[1], 'kv0') for x in fp[4:]] + [(x, None) for x in fp[7][2]]
    else: US.after = first_pieces()
    groups = front_groups('gu', 0, xacc, 'q') + front_groups('q', 32, lambda nb, tb: ar(aO + (nb * 4 + tb) * 4), 'd') + front_groups('d', 64, xacc, None)
    run_gemm(C, groups, US, [F1, F2], bars={128 + 61: None, 128 + 120: 'h'}, marks={128: 3, 256: 4}, bursts=bursts)
    stamp(C, 5)
    flush(C, F2)
    E(f"s_waitcnt vmcnt({C.vm.need('kv0')})\ns_barrier")
    for n in range(8): E(kread(ar(aPre(n)), n % 4, (n // 4) * 4096)[0], ('k0', n))
    E(f"s_lshl_b32 s{sT1}, s{sW}, 12\nv_add_u32 v{vDA}, s{sT1}, v{vLANE16}")
    F = Fill()
    for a in range(4):
        for tb in range(4):
            lo = vX + ((2 * a) * 4 + tb) * 4; hi = lo + 16
            for r, x in enumerate((lo, lo + 2, hi, hi + 2)): F.add('p', f"v_cvt_pk_bf16_f32 v{lo + r}, v{x}, v{x + 1}")
            if a < 2: F.add('w', f"ds_write_b128 v{vDA}, {vr(lo)} offset:{LDS_A + a * 16384 + tb * 1024}")
            else:
                for r in range(4): F.add('p', f"v_accvgpr_write_b32 a{aD + ((a - 2) * 4 + tb) * 4 + r}, v{lo + r}")
        if a == 0: flush(C, F)
    t1 = [(p, d, q_, 't1') for p, d, q_, _ in tile_dma('k', 1) + tile_dma('v', 1)]
    for n in range(8):
        E(f"s_waitcnt lgkmcnt({C.lg.need(('k0', n))})")
        for qb in range(4):
            E(qk_mfma(n, qb, vS[0], ar(aPre(n)), zero=True))
            if qb == 0: emit_dmas(C, [t1.pop(0)]); continue
            room = 3
            while F.q and room > 0:
                kind, text, tag = F.q.pop(0); E(text, tag); room -= F.W[kind]
    flush(C, F)
    E(f"s_sub_u32 s{sT1}, s{sM0A}, s{sRING}\ns_sub_u32 s{sT2}, s{sM0B}, s{sM0A}")
    for b in range(4): E(f"v_add_u32 v{vAACC + b}, s{sT1}, v{vAACC + b}")
    for b in range(4): E(f"v_add_u32 v{vANAT + b}, s{sT2}, v{vAACC + b}")
    A("L_max:")
    for x in group_reads(0, 8192, 0) + group_reads(1, 8192, 0): E(x)
    for qb in range(4):
        x, y, mm = vS[0] + qb * 4, vS[0] + (4 + qb) * 4, vE + qb
        E(f"v_max3_f32 v{mm}, v{x}, v{x+1}, v{vMT + qb}\nv_max3_f32 v{mm}, v{x+2}, v{x+3}, v{mm}\nv_max3_f32 v{mm}, v{y}, v{y+1}, v{mm}\nv_max3_f32 v{mm}, v{y+2}, v{y+3}, v{mm}")
    for op in ("v_permlane32_swap_b32", "v_permlane16_swap_b32"):
        for qb in range(4): E(f"v_mov_b32 v{vE + 4 + qb}, v{vE + qb}")
        for qb in range(4): E(f"{op} v{vE + qb}, v{vE + 4 + qb}")
        for qb in range(4): E(f"v_max_f32 v{vE + qb}, v{vE + qb}, v{vE + 4 + qb}")
    for qb in range(4):
        for r in range(4): E(f"v_sub_f32 v{vNM + 4 * qb + r}, 0, v{vE + qb}")
    for qb in range(4):
        x, y = vS[0] + qb * 4, vS[0] + (4 + qb) * 4
        for r in range(4): E(f"v_sub_f32 v{x + r}, v{x + r}, v{vE + qb}\nv_sub_f32 v{y + r}, v{y + r}, v{vE + qb}")
    E(f"s_mov_b32 s{sIT}, 0\ns_waitcnt lgkmcnt(1)")
    stamp(C, 6)
    step(C, 0, 8192, 0, [group_reads(0, 16384, 0), group_reads(1, 16384, 0)], [], pv=False)
    ext = {8 + j: [f"v_add_u32 v{vKA + j}, {LDS_K - LDS_K0}, v{vKA + j}"] for j in range(4)}
    for db in range(8): ext.setdefault(min(8 + db, 15) if db > 1 else 7 + db, []).append(f"v_add_u32 v{vVA + db}, {LDS_V - LDS_V0}, v{vVA + db}")
    wt = [([], f"buffer_load_dword v57, v58, {srd(S_WO)}, 0 offen", [], None)] if OPT['wotouch'] else []
    step(C, 1, 16384, 0, [group_reads(0, 16384, 0), group_reads(1, 16384, 0)], [(p, d, q_, ('t', 2)) for p, d, q_, _ in tile_dma('k', 2) + tile_dma('v', 2)] + wt,
         sync=lambda: C.vm.need('t1'), zero=True, extra=ext)
    if OPT['fused']:
        E(f"s_or_b32 s{sT1}, s2, s{sW}\ns_cmp_eq_u32 s{sT1}, 0\ns_cbranch_scc0 L_notok\nv_mov_b32 v{t[0]}, s{sCAND}\nv_mov_b32 v{t[1]}, 0\ns_mov_b64 exec, 1")
        A(f"global_atomic_cmpswap v{t[1]}, v[{t[0]}:{t[1]}], s[84:85] sc1\ns_mov_b64 exec, -1\nL_notok:")
    for k in range(8): E(f"ds_write_b128 v{vDA}, {ar(aD + 4 * k)} offset:{LDS_A + 32768 + (k // 4) * 16384 + (k % 4) * 1024}")
    E(f"s_mov_b32 s{S_DS}, s{S_WS}\ns_mov_b32 s{S_DS + 1}, s{S_WS + 1}\ns_mov_b32 s{S_DS + 3}, 0x20000\ns_mov_b32 s{sDOFF}, 0")
    E(f"s_cmp_eq_u32 s{sREDO}, 0\ns_cselect_b32 s{S_DS + 2}, 16384, 0\ns_or_b32 s{sT1}, s{sREDO}, s{sW}\ns_cmp_eq_u32 s{sT1}, 0\ns_cselect_b32 s{sTRIG}, 5, -1")
    E("s_waitcnt lgkmcnt(0)")
    stamp(C, 7)
    A(".p2align 6\nL_loop:")
    iteration(C, 0); iteration(C, 1)
    iteration(C, 2, tail=(f"s_add_u32 s{sIT}, s{sIT}, 1", f"s_cmp_lt_u32 s{sIT}, 10", "s_cbranch_scc1 L_loop"),
              hook=(f"s_cmp_eq_u32 s{sIT}, s{sTRIG}", "s_cbranch_scc1 L_dready", "L_dback:") if OPT['fused'] else ())
    C.vm.tag['t32'] = C.vm.n
    stamp(C, 8)
    UO = UnitStream(o_units(), lambda u: f"s_add_u32 m0, s{sM0A if u % 6 < 4 else sM0B}, {(u % 6) * 4096 if u % 6 < 4 else (5 - u % 6) * 16384}")
    E(o_off(0))
    if OPT['fused']:
        E(f"s_lshl_b32 s{sT1}, s{sRB}, 2\nv_mov_b32 v{t[1]}, 0\nv_mov_b32 v{t[3]}, s{sT1}")
        A(f"global_load_dword v{t[0]}, v{t[1]}, s[84:85] sc1\nglobal_load_dword v{t[2]}, v{t[3]}, s[84:85] offset:128 sc1"); C.vm.issue(); C.vm.issue('t32')
        slice_srd(C, S_DP, sG)
    step(C, 0, 16384, 16384, [vread(aF, 0, 16384 + 8192), vread(aF + 4, 1, 16384 + 8192)], [UO.next() for _ in range(12)])
    step(C, 1, 0, 16384 + 8192, [vread(aF, 0, 32768), vread(aF + 4, 1, 32768)], [], sync=lambda: C.vm.need('t32'), qk=False)
    dl = []
    if OPT['fused']:
        E(f"v_readfirstlane_b32 s{sT1}, v{t[2]}\ns_nop 0\ns_cmp_eq_u32 s{sT1}, {8 if OPT['early'] else 99}\ns_cselect_b32 s{sEARLY}, 1, 0\ns_cselect_b32 s{S_DP + 2}, s{S_DP + 2}, 0")
        dl = [([f"s_mov_b32 s{sST}, {(k // 2) << 21}"] if k % 2 == 0 else [], f"buffer_load_dwordx4 {ar(aD + 4 * k)}, v{vLANE16}, {srd(S_DP)}, s{sST} offen offset:{(k % 2) * 1024} sc1", [], 'dl') for k in range(16)]
    for qb in range(4): E(sum_mfma(qb, vP[1]))
    for n in range(8, 16):
        rd = vread(aF + 4 * ((n + 2) % 4), n + 2 - 8, 32768) if n + 2 < 16 else []
        for qb in range(4):
            E(pv_mfma(n, qb, vP[1]))
            if qb == 0:
                for x in rd: E(x)
            if qb == 1 and n < 12 and OPT['wo3']: emit_dmas(C, [UO.next()])
            if qb in (1, 2) and n >= 12 and dl: emit_dmas(C, [dl.pop(0)], nop=False)
            if qb == 2 and n >= 12: E(f"v_accvgpr_read_b32 v{vE + n - 12}, a{aL + 4 * (n - 12)}")
            if qb == 3 and n < 15: E(f"s_waitcnt lgkmcnt({len(rd)})")
    stamp(C, 9)
    E(f"s_mov_b32 s{sT1}, {f32(2.0 ** OPT['thr'])}\nv_mov_b32 v{vE + 4}, 0")
    for qb in range(4): E(f"v_cmp_nlt_f32 vcc, v{vE + qb}, s{sT1}\nv_rcp_f32 v{vE + qb}, v{vE + qb}\nv_cndmask_b32 v{vE + 4}, v{vE + 4}, 1, vcc")
    E(f"s_lshl_b32 s{sT1}, s{sW}, 8\ns_add_u32 s{sT1}, s{sT1}, {LDS_FLAG}\nv_lshl_add_u32 v{vE + 5}, v0, 2, s{sT1}")
    for w in range(4): E(f"ds_write_b32 v{vE + 5}, v{vE + 4} offset:{4096 * w}")
    for a in range(4):
        for qb in range(4):
            b = vS[0] + qb * 16
            for hh in range(2):
                for r in range(4): E(f"v_accvgpr_read_b32 v{b + 4 * hh + r}, a{aO + ((2 * a + hh) * 4 + qb) * 4 + r}")
            rl = vE + (qb & ~1); sel = qb & 1
            if not OPT['pk']:
                for r in range(8): E(f"v_mul_f32 v{b + r}, v{b + r}, v{vE + qb}")
            for r in (range(0, 8, 2) if OPT['pk'] else ()): E(f"v_pk_mul_f32 v[{b + r}:{b + r + 1}], v[{b + r}:{b + r + 1}], v[{rl}:{rl + 1}] op_sel:[0,{sel}] op_sel_hi:[1,{sel}]")
            for r in range(4): E(f"v_cvt_pk_bf16_f32 v{b + 8 + r}, v{b + 2 * r}, v{b + 2 * r + 1}")
            E(f"ds_write_b128 v{vOA}, {vr(b + 8)} offset:{a * 16384 + qb * 1024}")
            if dl: emit_dmas(C, [dl.pop(0)], nop=False)
    E(f"v_lshl_add_u32 v{vE + 5}, v0, 2, s{sM0B}\ns_waitcnt lgkmcnt(0)\ns_barrier")
    for w in range(4): E(f"ds_read_b32 v{vE + 6 + w}, v{vE + 5} offset:{256 * w}")
    E(f"s_waitcnt lgkmcnt(0)\nv_or_b32 v{vE + 6}, v{vE + 6}, v{vE + 7}\nv_or3_b32 v{vE + 6}, v{vE + 6}, v{vE + 8}, v{vE + 9}")
    E(f"v_cmp_ne_u32 vcc, 0, v{vE + 6}\ns_cmp_eq_u32 s{sREDO}, 0\ns_cselect_b64 s[{sC0}:{sC1}], vcc, 0\ns_cmp_lg_u64 s[{sC0}:{sC1}], 0\ns_cbranch_scc1 L_slow")
    stamp(C, 10)
    Fs = [Fill(113, 128), Fill()]
    for a in range(4): pack_store(Fs[a // 2], a, [f"s_mov_b32 s{sST}, {(16 << 20) + a * 4096}"])
    FG = Fill(16, 112)
    if OPT['fused']:
        for f in range(2):
            d = vG + 8 * f
            for k in range(8):
                for r in range(4):
                    x = vG + 16 + 4 * (r % 2) + 8 * (k % 2); a = d + 2 * r if k == 0 else x + 1
                    FG.add('p', f"v_accvgpr_read_b32 v{x}, a{aD + 4 * (2 * k + f) + r}\nv_lshlrev_b32 v{a}, 16, v{x}\nv_and_b32 v{a + 1}, 0xffff0000, v{x}")
                    if k: FG.add('p', f"v_add_f32 v{d + 2 * r}, v{d + 2 * r}, v{a}\nv_add_f32 v{d + 2 * r + 1}, v{d + 2 * r + 1}, v{a + 1}")
            silu(FG.add, d, vG + 32)
    run_gemm(C, o_groups(), UO, [FG, Fs[0]], after_tag={16: 'dl'} if OPT['fused'] else None)
    stamp(C, 11)
    flush(C, Fs[0]); flush(C, Fs[1])
    if OPT['fused']: tail(C)
    if OPT['stamps']:
        E("s_waitcnt vmcnt(0)"); stamp(C, 14 if OPT['fused'] else 12)
        E(f"s_memrealtime s[100:101]\ns_waitcnt lgkmcnt(0)\nv_writelane_b32 v55, s100, 18\nv_writelane_b32 v55, s96, 17\nv_writelane_b32 v55, s98, 16")
        if OPT['dbg']:
            E(f"v_mov_b32 v2, 0\ns_mov_b64 exec, 1\ns_not_b32 s96, s96\nv_mov_b32 v3, s96\nglobal_atomic_umax v2, v3, s[84:85] offset:8 sc1\nv_mov_b32 v4, s100\nglobal_atomic_umax v2, v4, s[84:85] offset:12 sc1")
            marks = [16, 1, 2, 3, 4, 5, 7, 8, 10, 11, 12, 13, 14]
            for k in range(12):
                E(f"v_readlane_b32 s4, v55, {marks[k]}\nv_readlane_b32 s5, v55, {marks[k + 1]}\ns_nop 1\ns_sub_u32 s4, s5, s4\nv_mov_b32 v{6 + k}, s4\nglobal_atomic_umax v2, v{6 + k}, s[84:85] offset:{16 + 4 * k} sc1")
            E("s_mov_b64 exec, -1")
        E(f"s_load_dwordx2 s[4:5], s[0:1], 88\ns_waitcnt lgkmcnt(0)\ns_add_u32 s4, s4, {64 << 20}\ns_addc_u32 s5, s5, 0\ns_mov_b32 s6, 0x100000\ns_mov_b32 s7, 0x20000")
        E(f"s_lshl_b32 s{sT1}, s2, 2\ns_add_u32 s{sT1}, s{sT1}, s{sW}\ns_lshl_b32 s{sT1}, s{sT1}, 8\nv_lshlrev_b32 v2, 2, v0\nbuffer_store_dword v55, v2, s[4:7], s{sT1} offen")
    A("L_end:\ns_endpgm")
    if OPT['fused']:
        A("L_dready:")
        E(f"s_lshl_b32 s{sT1}, s{sRB}, 2\nv_mov_b32 v{t[0]}, s{sT1}\nv_mov_b32 v{t[1]}, 1\ns_mov_b64 exec, 1")
        A(f"global_atomic_add v{t[0]}, v{t[1]}, s[84:85] offset:128 sc1\ns_mov_b64 exec, -1\ns_branch L_dback")
    A("L_slow:")
    E(f"s_waitcnt vmcnt(0)\ns_mov_b32 s{sREDO}, 1\ns_mov_b32 s{sIT}, 0\ns_lshl_b32 s{sKOFF}, s{sW}, 12\ns_mov_b32 m0, s{sKM0}")
    A("L_slow_loop:")
    E("s_barrier")
    for i in range(4): E(kdma(i))
    E(f"s_add_u32 s{sKOFF}, s{sKOFF}, 16384\ns_waitcnt vmcnt(0)\ns_barrier")
    for kb in range(4):
        for j in range(4): E(kread(ar(aPre(j)), j, kb * 4096)[0])
        E("s_waitcnt lgkmcnt(0)")
        for j in range(4):
            for qb in range(4): E(qk_mfma(j, qb, vS[0], ar(aPre(j)), zero=True))
        for qb in range(4):
            x = vS[0] + qb * 4
            E(f"v_max3_f32 v{vMT + qb}, v{x}, v{x+1}, v{vMT + qb}\nv_max3_f32 v{vMT + qb}, v{x+2}, v{x+3}, v{vMT + qb}")
    E(f"s_add_u32 s{sIT}, s{sIT}, 1\ns_cmp_lt_u32 s{sIT}, 32\ns_cbranch_scc1 L_slow_loop\ns_barrier")
    for j in range(4): E(f"v_subrev_u32 v{vKA + j}, {LDS_K - LDS_K0}, v{vKA + j}")
    for db in range(8): E(f"v_subrev_u32 v{vVA + db}, {LDS_V - LDS_V0}, v{vVA + db}")
    att_offsets(C)
    E(f"s_lshl_b32 s{sT1}, s{sW}, 12\nv_add_u32 v{vDA}, s{sT1}, v{vLANE16}")
    emit_dmas(C, first_pieces() + tile_dma('k', 1) + tile_dma('v', 1))
    E("s_waitcnt vmcnt(0)\ns_barrier")
    for n in range(8): E(kread(ar(aPre(n)), n % 4, (n // 4) * 4096)[0])
    E("s_waitcnt lgkmcnt(0)")
    for n in range(8):
        for qb in range(4): E(qk_mfma(n, qb, vS[0], ar(aPre(n)), zero=True))
    E("s_nop 7\ns_branch L_max")
    return A

def final_kernel():
    A = Asm()
    A("final_kernel:")
    A("s_cmp_ge_u32 s2, 256\ns_cbranch_scc1 L_fend")
    if OPT['stamps']: A("s_memrealtime s[30:31]")
    A("s_load_dwordx2 s[20:21], s[0:1], 0\ns_load_dwordx2 s[22:23], s[0:1], 72\ns_load_dwordx2 s[24:25], s[0:1], 88")
    A("v_lshrrev_b32 v1, 6, v0\nv_and_b32 v0, 63, v0\nv_readfirstlane_b32 s3, v1")
    A("s_lshr_b32 s16, s2, 3\ns_and_b32 s17, s2, 7")
    A("s_lshl_b32 s17, s17, 3\ns_lshl_b32 s3, s3, 1\ns_add_u32 s17, s17, s3")
    A("s_lshl_b32 s18, s16, 16\ns_lshl_b32 s19, s17, 10\ns_add_u32 s18, s18, s19")
    A("v_lshlrev_b32 v1, 4, v0\ns_waitcnt lgkmcnt(0)")
    A(f"s_add_u32 s4, s24, s18\ns_addc_u32 s5, s25, 0\ns_sub_u32 s6, {32 << 20}, s18\ns_mov_b32 s7, 0x20000")
    A(f"s_mov_b32 s8, s20\ns_mov_b32 s9, s21\ns_mov_b32 s10, {2 << 20}\ns_mov_b32 s11, 0x20000")
    A(f"s_mov_b32 s12, s22\ns_mov_b32 s13, s23\ns_mov_b32 s14, {2 << 20}\ns_mov_b32 s15, 0x20000")
    A("s_mov_b32 s26, 0")
    for k in range(16):
        for f in range(2): A(f"buffer_load_dwordx4 {vr(16 + (f * 16 + k) * 4)}, v1, s[4:7], s26 offen offset:{f * 1024}")
        if k < 15: A(f"s_add_u32 s26, s26, {2 << 20}")
    A("s_and_b32 s27, s17, 3\ns_lshl_b32 s27, s27, 4\ns_lshl_b32 s28, s16, 6\ns_add_u32 s27, s27, s28\ns_lshl_b32 s27, s27, 10")
    A("s_lshr_b32 s28, s17, 2\ns_lshl_b32 s28, s28, 6\ns_add_u32 s27, s27, s28")
    A("v_and_b32 v2, 15, v0\nv_lshrrev_b32 v3, 4, v0\nv_lshlrev_b32 v2, 10, v2\nv_lshl_add_u32 v2, v3, 3, v2\nv_add_u32 v2, s27, v2\nv_add_u32 v3, 16384, v2")
    for f in range(2):
        A(f"buffer_load_dwordx2 {vr(4 + 4 * f, 2)}, v{2 + f}, s[8:11], 0 offen\nbuffer_load_dwordx2 {vr(6 + 4 * f, 2)}, v{2 + f}, s[8:11], 0 offen offset:32")
    acc = lambda f, kind: 144 + (f * 2 + kind) * 8
    for k in range(16):
        for f in range(2):
            A(f"s_waitcnt vmcnt({35 - 2 * k - f})")
            src = 16 + (f * 16 + k) * 4; d = acc(f, k // 8)
            for r in range(4):
                if k % 8 == 0:
                    A(f"v_lshlrev_b32 v{d + 2 * r}, 16, v{src + r}\nv_and_b32 v{d + 2 * r + 1}, 0xffff0000, v{src + r}")
                else:
                    A(f"v_lshlrev_b32 v12, 16, v{src + r}\nv_and_b32 v13, 0xffff0000, v{src + r}\nv_add_f32 v{d + 2 * r}, v{d + 2 * r}, v12\nv_add_f32 v{d + 2 * r + 1}, v{d + 2 * r + 1}, v13")
    A("s_waitcnt vmcnt(0)")
    for f in range(2):
        d, s = acc(f, 0), acc(f, 1)
        for e in range(8): A(f"v_mul_f32 v{16 + e}, {f32(-math.log2(math.e))}, v{d + e}")
        for e in range(8): A(f"v_exp_f32 v{16 + e}, v{16 + e}")
        for e in range(8): A(f"v_add_f32 v{16 + e}, 1.0, v{16 + e}")
        for e in range(8): A(f"v_rcp_f32 v{16 + e}, v{16 + e}")
        for e in range(8): A(f"v_mul_f32 v{d + e}, v{d + e}, v{16 + e}")
        for r in range(4):
            x = 4 + 4 * f + r
            A(f"v_lshlrev_b32 v12, 16, v{x}\nv_and_b32 v13, 0xffff0000, v{x}")
            A(f"v_fma_f32 v12, v{s + 2 * r}, v{d + 2 * r}, v12\nv_fma_f32 v13, v{s + 2 * r + 1}, v{d + 2 * r + 1}, v13\nv_cvt_pk_bf16_f32 v{x}, v12, v13")
        A(f"buffer_store_dwordx2 {vr(4 + 4 * f, 2)}, v{2 + f}, s[12:15], 0 offen\nbuffer_store_dwordx2 {vr(6 + 4 * f, 2)}, v{2 + f}, s[12:15], 0 offen offset:32")
    if OPT['stamps']:
        A(f"s_waitcnt vmcnt(0)\ns_memrealtime s[32:33]\ns_waitcnt lgkmcnt(0)\ns_add_u32 s4, s24, {65 << 20}\ns_addc_u32 s5, s25, 0\ns_mov_b32 s6, 0x100000")
        A("s_lshl_b32 s26, s2, 3\nv_mov_b32 v2, 0\nv_mov_b32 v4, s30\nv_mov_b32 v5, s32\nbuffer_store_dwordx2 v[4:5], v2, s[4:7], s26 offen")
    A("L_fend:\ns_endpgm")
    return A

def descriptor(name, vg, acc, sg=102):
    return (f".amdhsa_kernel {name}\n  .amdhsa_next_free_vgpr {vg}\n  .amdhsa_next_free_sgpr {sg}\n  .amdhsa_accum_offset {acc}\n"
            f"  .amdhsa_group_segment_fixed_size 0\n  .amdhsa_kernarg_size 96\n  .amdhsa_user_sgpr_count 2\n"
            f"  .amdhsa_user_sgpr_kernarg_segment_ptr 1\n  .amdhsa_system_sgpr_workgroup_id_x 1\n"
            f"  .amdhsa_float_denorm_mode_32 3\n.end_amdhsa_kernel\n")

def build(verbose=False):
    head = [l for l in open(f"cdna_kernels/{NAME}.s.ref").read().split("\n") if l.startswith(";") and "@launch" not in l and "Override launch" not in l and "grid=ceil" not in l]
    out = "\n".join(head) + "\n"
    if OPT['fused']:
        out += f"; @launch grid=(256,1,1) block=(256,1,1) lds={LDS_TOTAL}\n"
        kernels = [(NAME + "_kernel", main_kernel, (512, 256))]
    else:
        out += f"; @launch kernel=main_kernel grid=(256,1,1) block=(256,1,1) lds={LDS_TOTAL}\n"
        out += "; @launch kernel=final_kernel grid=(256,1,1) block=(256,1,1) lds=0\n"
        kernels = [("main_kernel", main_kernel, (512, 256)), ("final_kernel", final_kernel, (176, 176, 40))]
    out += '.amdgcn_target "amdgcn-amd-amdhsa--gfx950"\n.text\n'
    for name, fn, _ in kernels:
        A = fn(); A.fix_hazards(verbose)
        out += f".globl {name}\n.p2align 8\n.type {name},@function\n" + A.text()
    out += '.section .rodata,"a"\n'
    for name, _, d in kernels: out += ".p2align 6\n" + descriptor(name, *d)
    return out

if __name__ == "__main__":
    dst = sys.argv[1] if len(sys.argv) > 1 else f"cdna_kernels/{NAME}.s"
    for a in sys.argv[2:]:
        k, v = a.split("="); OPT[k] = int(v)
    open(dst, "w").write(build(verbose=True))
```

```python
import math, struct, sys
from asmlib import Asm, Ins

NAME = "recurrent_scan__gqa_block_cached__glu_gated_glu__prompt"
OPT = dict(stamps=0, thr=30, room1=1, wotouch=1, paced=12, kvearly=0, kvst=0, pk=1, wo3=1, fused=1, limit=4096, dropflag=-1, early=1, dbg=0)

def f32(x): return "0x%08x" % struct.unpack("<I", struct.pack("<f", x))[0]
def vr(b, n=4): return f"v[{b}:{b+n-1}]"
def ar(b, n=4): return f"a[{b}:{b+n-1}]"
def mfma(d, a, b, c): return f"v_mfma_f32_16x16x32_bf16 {d}, {a}, {b}, {c}"
LOG2E = math.log2(math.e)
CQ = LOG2E / math.sqrt(128.0)

LDS_A = 0
LDS_R = 65536
RING = 24576
LDS_K, LDS_V = LDS_R, LDS_R + 49152
LDS_K0, LDS_K1, LDS_V0 = 32768, 40960, 57344
LDS_O = LDS_R
LDS_FLAG = LDS_R + 65536
LDS_TOTAL = 163840

S_X, S_K, S_V, S_WQ, S_WO, S_WG, S_WU, S_WD, S_WS, S_KV = 4, 8, 12, 16, 20, 24, 28, 32, 36, 88
sG, sRB, sW, sROT, sROT7, sRING = 40, 41, 42, 43, 44, 45
sOFF = {'gu': 64, 'q': 66, 'd': 68, 'o': 46}
sWR, sOB = 48, 70
sTMP, sT1, sT2, sT3 = 50, 51, 52, 53
sKOFF, sVOFF, sKM0, sVM0, sIT, sREDO = 54, 55, 56, 57, 58, 59
sC0, sC1, sCQ, sODD = 60, 61, 62, 63
sM0A, sM0B, sKV0, sKVM = 92, 93, 94, 95
sST = 3
S_DS, S_DP = S_WG, S_WU
sDOFF, sTRIG, sEARLY = 64, 65, 66
sCAND, sTOK, sJ, sREADY, sLOADED, sRAW, sAB, sCNT, sGONE, sTODO = 74, 75, 76, 77, 78, 79, 80, 81, 49, 47
def srd(b): return f"s[{b}:{b+3}]"

vLANE16 = 1
vT = list(range(2, 10))
vANAT, vAACC = 10, 14
vVO = {'gu': 18, 'q': 22, 'd': 26, 'o': 26}
vD0 = 30
vKA, vVA, vKD, vVD = 34, 38, 46, 50
vHA, vOB, vOA, vMT = 52, 54, 56, 60
vDA = 18
vQ, vX = 64, 128
vS = [128, 160]; vP = [192, 208]; vNM = 224; vE = 240
aF, aB, aONE, aL, aO = 0, 16, 108, 112, 128
def aPre(n): return 4 * n if n < 4 else 80 + 4 * (n - 4)
aB2 = 80
aD = 16

GEMM = {
    'gu': dict(nk=16, stride=3584, nat=True),
    'q':  dict(nk=16, stride=8192, nat=True),
    'd':  dict(nk=7, stride=1024, nat=False),
    'o':  dict(nk=16, stride=1024, nat=False),
}

class Counter:
    def __init__(self): self.n = 0; self.tag = {}
    def issue(self, tag=None):
        self.n += 1
        if tag is not None: self.tag[tag] = self.n
    def need(self, tag): return self.n - self.tag[tag]

class Ctx:
    def __init__(self):
        self.A = Asm(); self.vm = Counter(); self.lg = Counter()
    def emit(self, text, tag=None):
        for line in text.split('\n'):
            self.A(line)
            mn = line.strip().split()[0]
            if mn.startswith('buffer_'): self.vm.issue(tag)
            elif mn.startswith('ds_'): self.lg.issue(tag)

class UnitStream:
    def __init__(self, units, m0, after=()):
        self.units = units; self.m0 = m0; self.pos = 0; self.after = list(after)
    def remaining(self): return len(self.units) * 4 - self.pos
    def next(self):
        u, i = divmod(self.pos, 4); self.pos += 1
        U = self.units[u]
        d = f"buffer_load_dwordx4 v{vVO[U['g']] + i}, {srd(U['srd'])}, s{U['so']} offen offset:{i * 1024} lds"
        return ([self.m0(u)] if i == 0 else []), d, (U['lazy'] if i == 0 else []), ('u', id(self), u)
    def emit(self, C, count):
        assert count % 4 == 0 and self.pos % 4 == 0
        for _ in range(count // 4):
            L = [self.next() for _ in range(4)]
            C.emit(L[0][0][0] + "\ns_nop 0")
            for pre, d, post, tag in L: C.emit(d, tag)
            for p in L[0][2]: C.emit(p)

def front_units():
    out = []
    seq = [(n, s, h) for n in ('gu', 'q', 'd') for s in range(GEMM[n]['nk']) for h in range(2)]
    for k, (n, s, h) in enumerate(seq):
        G = GEMM[n]; step = 32 * G['stride']
        cur, nxt = sOFF[n] + s % 2, sOFF[n] + (s + 1) % 2
        lazy = []
        if h == 0 and n != 'gu': lazy = [f"s_add_u32 s{sTMP}, s{cur}, 128"]
        if h == 1 and s < G['nk'] - 1:
            lazy = [f"s_add_u32 s{nxt}, s{cur}, {step}", f"s_sub_u32 s{sWR}, s{nxt}, {step * G['nk']}", f"s_min_u32 s{nxt}, s{nxt}, s{sWR}"]
        out.append(dict(g=n, srd={'gu': (S_WG, S_WU)[h], 'q': S_WQ, 'd': S_WD}[n], so=sTMP if (h and n != 'gu') else cur, lazy=lazy))
    return out

O_ORDER = [(s, h) for s in range(12) for h in range(2)] + [(s, 0) for s in range(12, 16)] + [(s, 1) for s in range(12, 16)]
def o_off(k):
    s, h = O_ORDER[k]
    return f"s_add_u32 s{sOFF['o'] + k % 2}, s{sOB + s % 4}, {(s // 4) * 32768 + h * 128}"
def o_units():
    return [dict(g='o', srd=S_WO, so=sOFF['o'] + k % 2, lazy=[o_off(k + 1)] if k < 31 else []) for k in range(32)]

class Fill:
    W = {'p': 1, 't': 2, 'w': 2, 'v': 2, 's': 0, 'G': 0}
    def __init__(self, lo=0, hi=0): self.q = []; self.lo = lo; self.hi = hi; self.done = 0; self.total = 0
    def add(self, kind, text, tag=None):
        for line in (text.split('\n') if kind != 'G' else [text]):
            self.q.append((kind, line, tag)); self.total += self.W[kind]
    def pick(self, n, room, mem_ok, here, window=40):
        while self.q and self.q[0][0] == 'G' and n >= self.q[0][1]: self.q.pop(0)
        rd, wr, best = set(), set(), None
        for j, (kind, text, tag) in enumerate(self.q[:window]):
            if kind == 'G': break
            I = Ins(text)
            free = not (I.rd & wr or I.wr & (rd | wr) or I.rd & here)
            if free and self.W[kind] <= room and (kind not in 'wv' or mem_ok):
                if self.W[kind] != 1: return j
                if best is None: best = j
            rd |= I.rd; wr |= I.wr
        return best

def run_gemm(C, groups, US, fills=(), bars=None, marks=None, bursts=None, after_tag=None):
    ng = len(groups); bars = bars or {}
    def utag(u): return ('u', id(US), u)
    def tr(n): return groups[n]['tr'](aF + 4 * (n % 4))
    g0 = groups[0]
    C.emit(f"s_waitcnt vmcnt({C.vm.need(utag(g0['u']))})")
    for tb in range(4): C.emit(g0['bread'](g0['b'], tb), ('b', g0['b']))
    for n in range(2):
        for x in tr(n): C.emit(x, ('a', n))
    C.emit(f"s_waitcnt lgkmcnt({C.lg.need(('a', 0))})")
    lazy = []
    for n, g in enumerate(groups):
        if marks and n in marks: stamp(C, marks[n])
        if after_tag and n in after_tag: assert C.vm.tag[after_tag[n]] <= C.vm.tag[utag(groups[n + 1]['u'])]
        gaps = [[], [], [], []]
        if n + 2 < ng: gaps[0] += [(x, ('a', n + 2)) for x in tr(n + 2)]
        item = None
        if US.remaining() > 0:
            if US.pos // 4 <= g['u'] + 5: item = US.next()
        elif US.after: item = US.after.pop(0)
        post = []
        if item:
            pre, d, post, tag = item
            gaps[1] = [(d, tag)]
            if pre:
                due = lazy + pre; lazy = []
                for x in due[:-1]: C.emit(x)
                gaps[0] = [(due[-1], None)] + gaps[0]
        if lazy and not (gaps[0] and gaps[0][0][0].startswith('s_')): gaps[0] = [(lazy.pop(0), None)] + gaps[0]
        lazy += post
        room = [0, OPT['room1'] if item else 2, 2 - len(g['breads']), 2]
        burst = bursts.get(n) if bursts else None
        if n in bars:
            assert not g['breads']
            gaps[2] = [("s_barrier", None)]; room[2] = 0
        elif item and US.remaining() > 0 and not g['breads'] and not burst and US.pos < (g['u'] + 5) * 4 + n % 4 + 1:
            pre, d, post, tag = US.next()
            gaps[2] = [(x, None) for x in (lazy + pre + ["s_nop 0"] if pre else [])] + [(d, tag)]
            lazy = (lazy if not pre else []) + post; room[2] = 0
        elif burst:
            assert not g['breads'] and not lazy and US.pos % 4 == 0
            for x, _ in burst:
                for F in fills: assert not any(Ins(x).rd & Ins(y).wr for k_, y, _t in F.q if k_ != 'G' and F.lo <= n), ("burst before its data", n, x)
            gaps[2] = list(burst); room[2] = 0
        else:
            if lazy: gaps[2].append((lazy.pop(0), None))
            for b in g['breads']: gaps[2].append((g['bread'](*b), ('b', b[0])))
        for F in fills:
            if not (F.lo <= n): continue
            quota = F.total * min(n + 1 - F.lo, F.hi - F.lo) / (F.hi - F.lo)
            for k in (1, 2, 3):
                here = set()
                while F.q and F.done < quota:
                    empty = not any(not x.startswith('s_') for x, _ in gaps[k])
                    j = F.pick(n, room[k], empty and k != 3, here)
                    if j is None: break
                    kind, text, tag = F.q.pop(j)
                    here |= Ins(text).wr
                    gaps[k].append((text, tag)); room[k] -= F.W[kind]; F.done += F.W[kind]
            if n + 1 == F.hi and F.q and n + 1 < ng:
                print(f"; filler overflow at group {n}: {len(F.q)} left")
                gaps[3] += [(x, tag) for k_, x, tag in F.q if k_ != 'G']; F.q = []
        for tb in range(4):
            C.emit(mfma(g['acc'][tb], ar(aF + 4 * (n % 4)), ar(aB + 16 * g['bbuf'] + 4 * tb), "0" if g['first'] else g['acc'][tb]))
            late = []
            if tb == 3 and n + 1 < ng:
                tags = [('a', n + 1)]
                if groups[n + 1]['b'] != g['b']: tags.append(('b', groups[n + 1]['b']))
                w = f"lgkmcnt({min(C.lg.need(x) for x in tags)})"
                if n + 3 < ng and groups[n + 3]['u'] != groups[n + 2]['u']:
                    w = f"vmcnt({C.vm.need(utag(groups[n + 3]['u']))}) " + w
                C.emit("s_waitcnt " + w)
            if tb == 1 and n in bars and bars[n] is not None:
                C.emit(f"s_waitcnt lgkmcnt({C.lg.need(bars[n])})")
            for x, tag in gaps[tb]: C.emit(x, tag)
    for x in lazy: C.emit(x)

def front_groups(name, u0, accf, nxt):
    G = GEMM[name]; nk = G['nk']
    addr, uoff = (vANAT, 512) if G['nat'] else (vAACC, 2048)
    par = (u0 // 2) % 2
    def bread(bs, tb):
        return f"ds_read_b128 {ar(aB + 16 * bs[2] + 4 * tb)}, v{vLANE16} offset:{LDS_A + (bs[1] * 4 + tb) * 1024}"
    groups = []
    for s in range(nk):
        for nb in range(8):
            u = u0 + 2 * s + nb // 4
            def tr(b, u=u, nb=nb):
                o = (u % 6) * 4096
                return [f"ds_read_b64_tr_b16 {ar(b, 2)}, v{addr + nb % 4} offset:{o}", f"ds_read_b64_tr_b16 {ar(b + 2, 2)}, v{addr + nb % 4} offset:{o + uoff}"]
            nb_key = (name, s + 1, (par + s + 1) % 2) if s + 1 < nk else ((nxt, 0, (par + s + 1) % 2) if nxt else None)
            groups.append(dict(u=u, b=(name, s, (par + s) % 2), bbuf=(par + s) % 2, acc=[accf(nb, tb) for tb in range(4)], first=s == 0,
                               breads=[(nb_key, nb - 1)] if (1 <= nb <= 4 and nb_key) else [], tr=tr, bread=bread))
    return groups

def o_groups():
    def bread(bs, tb): return f"ds_read_b128 {ar(aB2 + 16 * bs[2] + 4 * tb)}, v{vOB} offset:{(bs[1] * 4 + tb) * 1024}"
    steps = [(s, (0, 1)) for s in range(12)] + [(s, (0,)) for s in range(12, 16)] + [(s, (1,)) for s in range(12, 16)]
    groups = []; u = 0
    for k, (s, hs) in enumerate(steps):
        nxt = (k + 1, steps[k + 1][0], (k + 1) % 2) if k + 1 < len(steps) else None
        for idx, (h, b4) in enumerate((h, b4) for h in hs for b4 in range(4)):
            uu = u + idx // 4
            def tr(b, uu=uu, b4=b4):
                q = uu % 6
                addr, o = (vAACC, q * 4096) if q < 4 else (vANAT, (5 - q) * 16384)
                return [f"ds_read_b64_tr_b16 {ar(b, 2)}, v{addr + b4} offset:{o}", f"ds_read_b64_tr_b16 {ar(b + 2, 2)}, v{addr + b4} offset:{o + 2048}"]
            j = idx - 1 if len(hs) == 2 else idx
            groups.append(dict(u=uu, b=(k, s, k % 2), bbuf=k % 2 + (aB2 - aB) // 16, acc=[xacc(4 * h + b4, tb) for tb in range(4)], first=s == 0,
                               breads=[(nxt, j)] if (nxt and 0 <= j < 4) else [], tr=tr, bread=bread))
        u += len(hs)
    return groups

def xacc(nb, tb): return vr(vX + (nb * 4 + tb) * 4)

def pack_store(F, a, base_ops):
    for x in base_ops: F.add('s', x)
    for tb in range(4):
        lo = vX + ((2 * a) * 4 + tb) * 4; hi = lo + 16
        F.add('p', f"v_cvt_pk_bf16_f32 v{lo}, v{lo}, v{lo+1}\nv_cvt_pk_bf16_f32 v{lo+1}, v{lo+2}, v{lo+3}\n"
                   f"v_cvt_pk_bf16_f32 v{lo+2}, v{hi}, v{hi+1}\nv_cvt_pk_bf16_f32 v{lo+3}, v{hi+2}, v{hi+3}")
        F.add('v', f"buffer_store_dwordx4 {vr(lo)}, v{vLANE16}, {srd(S_WS)}, s{sST} offen offset:{tb * 1024}" + (" sc1" if OPT['fused'] else ""))

def flush(C, F):
    for kind, text, tag in F.q: C.emit(text, tag)
    F.q = []

def kread(buf, j, off): return [f"ds_read_b128 {buf}, v{vKA + j} offset:{off}"]
def vread(b, db, off):
    return [f"ds_read_b64_tr_b16 {ar(b, 2)}, v{vVA + db} offset:{off}", f"ds_read_b64_tr_b16 {ar(b + 2, 2)}, v{vVA + db} offset:{off + 4096}"]
def kdma(i): return f"buffer_load_dwordx4 v{vKD + i}, {srd(S_K)}, s{sKOFF} offen offset:{i * 1024} lds"
def vdma(i): return f"buffer_load_dwordx4 v{vVD + i % 2}, {srd(S_V)}, s{sVOFF} offen offset:{i * 1024} lds"
def adv(s): return [f"s_add_u32 s{s}, s{s}, 16384", f"s_and_b32 s{s}, s{s}, 0x7ffff"]
def tile_dma(which, slot):
    if which == 'k': return [([f"s_add_u32 m0, s{sKM0}, {slot * 16384}"] if i == 0 else [], kdma(i), adv(sKOFF) if i == 3 else [], None) for i in range(4)]
    return [([f"s_add_u32 m0, s{sVM0}, {slot * 16384}"] if i == 0 else [], vdma(i), adv(sVOFF) if i == 3 else [], None) for i in range(4)]

def group_reads(n, koff, voff):
    b = aF + 4 * (n % 4)
    if n < 8: return kread(ar(b), n % 4, koff + (n // 4) * 4096)
    return vread(b, n - 8, voff)
def qk_mfma(n, qb, S, A=None, zero=False):
    kb, j = n // 4, n % 4
    d = vr(S + (kb * 4 + qb) * 4)
    return mfma(d, A or ar(aF + 4 * (n % 4)), vr(vQ + (qb * 4 + j) * 4), d if j else ("0" if zero else vr(vNM + 4 * qb)))
def pv_mfma(n, qb, P, zero=False):
    d = ar(aO + ((n - 8) * 4 + qb) * 4)
    return mfma(d, ar(aF + 4 * (n % 4)), vr(P + 4 * qb), "0" if zero else d)
def sum_mfma(qb, P, zero=False):
    d = ar(aL + 4 * qb)
    return mfma(d, ar(aONE), vr(P + 4 * qb), "0" if zero else d)

def step(C, par, koff, voff, look, dmas, sync=None, tail=(), qk=True, pv=True, zero=False, extra=None, h6=()):
    Sc, Sn, Pc, Pp = vS[par], vS[1 - par], vP[par], vP[1 - par]
    extra = extra or {}
    def ex(e):
        x = Sc + (((e // 4) % 2) * 4 + e // 8) * 4 + e % 4
        return f"v_exp_f32 v{x}, v{x}"
    def cv(k):
        x = Sc + (((k // 2) % 2) * 4 + k // 4) * 4 + 2 * (k % 2)
        return f"v_cvt_pk_bf16_f32 v{Pc + k}, v{x}, v{x + 1}"
    ns = [n for n in range(16) if (qk if n < 8 else pv)]
    per = 32 // len(ns)
    dmas = list(dmas); scal = []
    e = 0; c = 0
    for idx, n in enumerate(ns):
        lastg = idx == len(ns) - 1
        rd = group_reads(ns[idx + 2], koff, voff) if idx + 2 < len(ns) else []
        cs = []
        while c < e // 2: cs.append(cv(c)); c += 1
        es = [ex(e + k) for k in range(per)]; e += per
        g = [[], [], [], []]; tags = [None] * 4
        w = None
        if not lastg:
            w = f"s_waitcnt lgkmcnt({len(rd)})"
            if idx == len(ns) - 2 and sync is not None: w = 'SYNC'
        xs = list(extra.get(n, []))
        if per == 4:
            if lastg:
                g = [(["s_barrier"] if sync is not None else []), look[0] + [es[0]], [es[1]] + cs, [es[2], es[3]] + xs]
            else:
                g = [rd + cs[:1], [es[0]] + cs[1:], [es[1]] + xs, [w, es[2], es[3]]]
                if dmas:
                    pre, d, post, tag = dmas.pop(0)
                    g[0] = scal + pre + g[0]; scal = list(post); g[1] = [d]; tags[1] = tag; g[2] = [es[0]] + cs[1:] + [es[1]] + xs
        elif lastg:
            g[0] = ["s_barrier"] if sync is not None else []
            g[1] = look[0] + (cs if len(look[0]) == 1 else []); g[2] = [es[0]]; g[3] = [es[1]]
            if len(look[0]) == 2: c -= len(cs)
            g[0] += xs if sync is None else []; g[3] += xs if sync is not None else []
        elif dmas:
            pre, d, post, tag = dmas.pop(0)
            one = len(rd) < 2
            g[0] = scal + pre + rd + (cs if one else []); scal = list(post)
            g[1] = [d] + ([] if one else cs); tags[1] = tag; g[2] = [es[0]] + xs; g[3] = [w, es[1]]
        elif len(rd) == 2:
            g = [rd, scal[:1] + [es[0]], cs + xs, [w, es[1]]]; scal = scal[1:]
        else:
            g = [(list(h6) if n == 14 else []) + rd + cs, scal[:1] + [es[0]], xs, [w, es[1]]]; scal = scal[1:]
        for qb in range(4):
            C.emit(qk_mfma(n, qb, Sn) if n < 8 else pv_mfma(n, qb, Pp, zero))
            for x in g[qb]:
                if x == 'SYNC': x = f"s_waitcnt vmcnt({sync() if callable(sync) else sync}) lgkmcnt(0)"
                C.emit(x, tags[qb] if x.startswith('buffer_') else None)
    assert not dmas
    cs = [cv(k) for k in range(c, 16)]
    wl = f"s_waitcnt lgkmcnt({len(look[1])})"
    if not pv:
        for x in scal + look[1] + cs + [wl]: C.emit(x)
        return
    one = len(look[1]) == 1
    g = [look[1] + (cs[:1] if one else []), cs[1:] if one else cs, scal, [wl]]
    if tail: g[1] = [tail[0]] + g[1]; g[2] = g[2] + [tail[1]]; g[3] = g[3] + [tail[2]]
    for qb in range(4):
        C.emit(sum_mfma(qb, Pp, zero))
        for x in g[qb]: C.emit(x)

def iteration(C, k, tail=(), hook=()):
    slot = (k + 1) % 3
    ks, nx, ds = slot * 16384, ((slot + 1) % 3) * 16384, (slot + 2) % 3
    def st(j): return [([], f"buffer_store_dwordx4 {vr(vE)}, v{vLANE16}, {srd(S_DS)}, s{sDOFF} offen offset:{(j - 1) * 1024}" + (" sc1" if OPT['fused'] else ""),
                        [f"s_add_u32 s{sDOFF}, s{sDOFF}, 4096"] if j == 4 else [], None)] if 1 <= j <= 4 else []
    def rd(j): return [f"ds_read_b128 {vr(vE)}, v{vDA} offset:{j * 1024}"] if j <= 3 else ([f"v_add_u32 v{vDA}, 16384, v{vDA}"] if j == 4 else list(hook))
    step(C, 0, ks, ks, [group_reads(0, ks + 8192, 0), group_reads(1, ks + 8192, 0)], tile_dma('k', ds) + st(2 * k), h6=rd(2 * k))
    step(C, 1, ks + 8192, ks + 8192, [group_reads(0, nx, 0), group_reads(1, nx, 0)], tile_dma('v', ds) + st(2 * k + 1),
         sync=(9, 11, 10)[k], tail=tail, h6=rd(2 * k + 1))

def xlane(C, op, m, t):
    C.emit(f"v_mov_b32 v{t}, v{m}\nv_permlane32_swap_b32 v{m}, v{t}\n{op} v{m}, v{m}, v{t}")
    C.emit(f"v_mov_b32 v{t}, v{m}\nv_permlane16_swap_b32 v{m}, v{t}\n{op} v{m}, v{m}, v{t}")

def stamp(C, k):
    if OPT['stamps'] and k in (11, 12, 13): C.A(f"s_memrealtime s[100:101]\ns_waitcnt lgkmcnt(0)\nv_writelane_b32 v55, s100, {k + 8}")
    if OPT['stamps']: C.A(f"s_memtime s[100:101]\ns_waitcnt lgkmcnt(0)\nv_writelane_b32 v55, s100, {k}")

def att_offsets(C):
    E = C.emit
    E(f"s_and_b32 s{sT2}, s{sRB}, {OPT['kvst']}\ns_lshl_b32 s{sT2}, s{sT2}, {14 + OPT.get('kvsh', 0)}\ns_and_b32 s{sT3}, s{sW}, 1\ns_lshl_b32 s{sT3}, s{sT3}, 12\ns_add_u32 s{sKV0}, s{sT2}, s{sT3}")
    E(f"s_lshr_b32 s{sT1}, s{sW}, 1\ns_add_u32 s{sT1}, s{sT1}, 1\ns_lshl_b32 s{sT1}, s{sT1}, 13\ns_add_u32 s{sKOFF}, s{sKV0}, s{sT1}")
    E(f"s_and_b32 s{sKOFF}, s{sKOFF}, 0x7ffff\ns_mov_b32 s{sVOFF}, s{sKOFF}")

def first_pieces():
    L = [([f"s_mov_b32 m0, s{sKVM}"] if i == 0 else [], f"buffer_load_dwordx4 v{vD0 + i}, {srd(S_KV)}, s{sKV0} offen offset:{i * 1024} lds", [], 'kv0') for i in range(4)]
    L += [([f"s_sub_u32 m0, s{sKM0}, {LDS_K - LDS_K1}"] if i == 0 else [], kdma(i), adv(sKOFF) if i == 3 else [], 'kv0') for i in range(4)]
    return L

def emit_dmas(C, L, nop=True):
    for pre, d, post, tag in L:
        for x in pre: C.emit(x)
        if pre and nop: C.emit("s_nop 0")
        C.emit(d, tag)
        for x in post: C.emit(x)

vG = 64

def silu(add, d, tmp):
    for e in range(8): add('p', f"v_mul_f32 v{tmp + e}, {f32(-LOG2E)}, v{d + e}")
    for e in range(8): add('t', f"v_exp_f32 v{tmp + e}, v{tmp + e}")
    for e in range(8): add('p', f"v_add_f32 v{tmp + e}, 1.0, v{tmp + e}")
    for e in range(8): add('t', f"v_rcp_f32 v{tmp + e}, v{tmp + e}")
    for e in range(8): add('p', f"v_mul_f32 v{d + e}, v{d + e}, v{tmp + e}")

def slice_srd(C, SP, sj):
    C.emit(f"s_lshl_b32 s{sT1}, s{sRB}, 2\ns_add_u32 s{sT1}, s{sT1}, s{sW}\ns_lshl_b32 s{sT1}, s{sT1}, 3\ns_add_u32 s{sT1}, s{sT1}, s{sj}\ns_lshl_b32 s{sT1}, s{sT1}, 11")
    C.emit(f"s_add_u32 s{SP}, s86, s{sT1}\ns_addc_u32 s{SP + 1}, s87, 0\ns_sub_u32 s{SP + 2}, {32 << 20}, s{sT1}\ns_mov_b32 s{SP + 3}, 0x20000")

def tail(C):
    E = C.emit; A = C.A; t = vT
    SF, SP, SO = S_K, S_V, S_WQ
    vTOK, vPA, vPL, vXA, vXD, vD, vSs, vU = t[0], t[2], t[3], t[4], 112, 192, 128, 96
    E(f"s_lshl_b32 s{sT1}, s{sRB}, 10\ns_add_u32 s{sT1}, s{sT1}, {32 << 20}\ns_add_u32 s{SF}, s86, s{sT1}\ns_addc_u32 s{SF + 1}, s87, 0\ns_mov_b32 s{SF + 2}, 1024\ns_mov_b32 s{SF + 3}, 0x20000")
    E(f"s_lshl_b32 s{sT1}, s{sRB}, 16\ns_add_u32 s{SO}, s82, s{sT1}\ns_addc_u32 s{SO + 1}, s83, 0\ns_mov_b32 s{SO + 2}, 65536\ns_mov_b32 s{SO + 3}, 0x20000")
    E(f"s_lshl_b32 s{sT2}, s{sW}, 8\nv_and_b32 v{vPA}, 15, v0\nv_lshl_add_u32 v{vPA}, v{vPA}, 2, s{sT2}")
    poll = f"buffer_load_dword v{vPL}, v{vPA}, {srd(SF)}, 0 offen sc1"
    E(poll)
    E(f"v_readfirstlane_b32 s{sTOK}, v{vTOK}\ns_mov_b32 s{sCNT}, 0\ns_mov_b32 s{sGONE}, 0\ns_mov_b32 s{sJ}, s{sG}\ns_lshl_b32 s{sREADY}, 1, s{sG}\ns_mov_b32 s{sTODO}, -1")
    E(f"s_cmp_lg_u32 s{sTOK}, 0\ns_cbranch_scc1 L_havetok")
    E(f"v_mov_b32 v{t[4]}, s{sCAND}\nv_mov_b32 v{t[5]}, 0\nglobal_atomic_cmpswap v{t[6]}, v{t[5]}, v[{t[4]}:{t[5]}], s[84:85] sc0 sc1\ns_waitcnt vmcnt(0)")
    E(f"v_readfirstlane_b32 s{sTOK}, v{t[6]}\ns_nop 0\ns_cmp_eq_u32 s{sTOK}, 0\ns_cselect_b32 s{sTOK}, s{sCAND}, s{sTOK}")
    A("L_havetok:")
    if OPT['dropflag'] >= 0: E(f"s_cmp_eq_u32 s{sG}, {OPT['dropflag']}\ns_cbranch_scc0 L_sendflag\ns_mov_b32 s{sT1}, 0\nL_late:\ns_sleep 127\ns_add_u32 s{sT1}, s{sT1}, 1\ns_cmp_lt_u32 s{sT1}, 200\ns_cbranch_scc1 L_late\nL_sendflag:")
    E("s_waitcnt vmcnt(0)\ns_barrier")
    stamp(C, 12)
    E(f"s_cmp_eq_u32 s{sW}, 0\ns_cbranch_scc0 L_slice")
    E(f"s_lshl_b32 s{sT1}, s{sG}, 2\nv_lshlrev_b32 v{t[5]}, 8, v0\nv_mov_b32 v{t[6]}, s{sTOK}\nbuffer_store_dword v{t[6]}, v{t[5]}, {srd(SF)}, s{sT1} offen sc1")
    A("L_slice:")
    slice_srd(C, SP, sJ)
    E(f"s_and_b32 s{sT1}, s{sJ}, 1\ns_lshl_b32 s{sT1}, s{sT1}, 15\ns_lshr_b32 s{sT2}, s{sJ}, 1\ns_lshl_b32 s{sT2}, s{sT2}, 6\ns_add_u32 s{sT1}, s{sT1}, s{sT2}\ns_lshl_b32 s{sT2}, s{sW}, 8\ns_add_u32 s{sT1}, s{sT1}, s{sT2}")
    E(f"v_and_b32 v{vXA}, 15, v0\nv_lshrrev_b32 v{vXA + 1}, 4, v0\nv_lshlrev_b32 v{vXA}, 10, v{vXA}\nv_lshl_add_u32 v{vXA}, v{vXA + 1}, 3, v{vXA}\nv_add_u32 v{vXA}, s{sT1}, v{vXA}\nv_add_u32 v{vXA + 1}, 16384, v{vXA}")
    for f in range(2):
        for h in range(2): E(f"buffer_load_dwordx2 {vr(vXD + 4 * f + 2 * h, 2)}, v{vXA + f}, {srd(S_X)}, 0 offen offset:{32 * h}")
    E(f"s_mov_b32 s{sLOADED}, 0")
    A("L_look:")
    E(f"v_cmp_eq_u32 vcc, s{sTOK}, v{vPL}\ns_and_b32 s{sRAW}, vcc_lo, 0xff\ns_lshr_b32 s{sAB}, vcc_lo, 8\ns_and_b32 s{sAB}, s{sAB}, 0xff\ns_or_b32 s{sREADY}, s{sREADY}, s{sRAW}")
    E(f"s_andn2_b32 s{sT3}, s{sREADY}, s{sLOADED}\ns_mov_b32 s{sLOADED}, s{sREADY}")
    for k in range(8):
        E(f"s_bitcmp1_b32 s{sT3}, {k}\ns_cbranch_scc0 L_skip{k}\ns_mov_b32 s{sT1}, {k << 21}\ns_mov_b32 s{sT2}, {(16 << 20) + (k << 21)}")
        for base, so in ((vSs, sT2), (vD, sT1)):
            if base == vD: E(f"s_cmp_lg_u32 s{sEARLY}, 0\ns_cbranch_scc1 L_skip{k}")
            for f in range(2): E(f"buffer_load_dwordx4 {vr(base + (f * 8 + k) * 4)}, v{vLANE16}, {srd(SP)}, s{so} offen offset:{f * 1024} sc1")
        A(f"L_skip{k}:")
    E(f"s_cmp_eq_u32 s{sRAW}, 0xff\ns_cbranch_scc1 L_sum")
    E(f"s_cmp_lg_u32 s{sT3}, 0\ns_cbranch_scc1 L_poll\ns_bitcmp1_b32 s{sRAW}, s{sG}\ns_cbranch_scc0 L_poll\ns_cmp_lg_u32 s{sGONE}, 0\ns_cbranch_scc1 L_fin\ns_sleep 4\ns_add_u32 s{sCNT}, s{sCNT}, 1\ns_cmp_lt_u32 s{sCNT}, {OPT['limit']}\ns_cbranch_scc1 L_poll")
    E(f"s_lshl_b32 s{sT1}, s{sW}, 8\ns_lshl_b32 s{sT2}, s{sG}, 2\ns_add_u32 s{sT1}, s{sT1}, s{sT2}\ns_add_u32 s{sT1}, s{sT1}, 32\nv_lshlrev_b32 v{t[6]}, 10, v0\nv_mov_b32 v{t[7]}, s{sTOK}")
    E(f"buffer_store_dword v{t[7]}, v{t[6]}, {srd(SF)}, s{sT1} offen sc1\ns_mov_b32 s{sGONE}, 1\ns_waitcnt vmcnt(0)")
    A("L_poll:")
    E(poll + "\ns_waitcnt vmcnt(0)\ns_branch L_look")
    A("L_sum:")
    E("s_waitcnt vmcnt(0)")
    stamp(C, 13)
    def total(base, d):
        for k in range(8):
            for r in range(4):
                a = d + 2 * r if k == 0 else vU + 2 * r
                E(f"v_lshlrev_b32 v{a}, 16, v{base + 4 * k + r}\nv_and_b32 v{a + 1}, 0xffff0000, v{base + 4 * k + r}")
            for r in (range(4) if k else ()): E(f"v_pk_add_f32 v[{d + 2 * r}:{d + 2 * r + 1}], v[{d + 2 * r}:{d + 2 * r + 1}], v[{vU + 2 * r}:{vU + 2 * r + 1}]")
    E(f"s_cmp_lg_u32 s{sEARLY}, 0\ns_cbranch_scc1 L_gated")
    for f in range(2):
        total(vD + 32 * f, vG + 8 * f); silu(lambda k, x: E(x), vG + 8 * f, vU)
    A("L_gated:")
    for f in range(2):
        d, sm = vG + 8 * f, vG + 16 + 8 * f
        total(vSs + 32 * f, sm)
        for r in range(4):
            x = vXD + 4 * f + r; u = vU + 2 * r
            E(f"v_lshlrev_b32 v{u}, 16, v{x}\nv_and_b32 v{u + 1}, 0xffff0000, v{x}")
            E(f"v_pk_fma_f32 v[{u}:{u + 1}], v[{sm + 2 * r}:{sm + 2 * r + 1}], v[{d + 2 * r}:{d + 2 * r + 1}], v[{u}:{u + 1}]\nv_cvt_pk_bf16_f32 v{x}, v{u}, v{u + 1}")
        for h in range(2): E(f"buffer_store_dwordx2 {vr(vXD + 4 * f + 2 * h, 2)}, v{vXA + f}, {srd(SO)}, 0 offen offset:{32 * h}")
    E(f"s_lshl_b32 s{sT1}, 1, s{sJ}\ns_andn2_b32 s{sTODO}, s{sTODO}, s{sT1}\ns_and_b32 s{sT1}, s{sTODO}, s{sAB}\ns_cbranch_scc0 L_fin")
    E(f"s_ff1_i32_b32 s{sJ}, s{sT1}\ns_mov_b32 s{sEARLY}, 0\ns_waitcnt vmcnt(0)\ns_branch L_slice")
    A("L_fin:")

def main_kernel():
    C = Ctx(); E = C.emit; A = C.A
    t = vT
    A(f"{NAME}_kernel:" if OPT['fused'] else "main_kernel:")
    E("s_cmp_ge_u32 s2, 256\ns_cbranch_scc1 L_end")
    if OPT['stamps'] or OPT['dbg']: E("s_memrealtime s[96:97]\ns_memtime s[98:99]")
    E("s_load_dwordx16 s[64:79], s[0:1], 0\ns_load_dwordx4 s[80:83], s[0:1], 64\ns_load_dwordx4 s[84:87], s[0:1], 80\ns_memrealtime s[60:61]")
    E(f"v_lshrrev_b32 v{t[0]}, 6, v0\nv_and_b32 v0, 63, v0\nv_readfirstlane_b32 s{sW}, v{t[0]}")
    E(f"s_and_b32 s{sG}, s2, 7\ns_lshr_b32 s{sRB}, s2, 3\ns_and_b32 s{sROT}, s{sRB}, 15\ns_and_b32 s{sODD}, s2, 1")
    E(f"v_and_b32 v{t[0]}, 15, v0\nv_lshrrev_b32 v{t[1]}, 4, v0\ns_lshl_b32 s{sT2}, s{sW}, 14")
    E(f"v_lshlrev_b32 v{t[2]}, 10, v{t[0]}\nv_lshl_add_u32 v{t[2]}, v{t[1]}, 4, v{t[2]}\nv_add_u32 v{t[2]}, s{sT2}, v{t[2]}")
    E(f"s_lshl_b32 s8, s{sROT}, 6\ns_lshl_b32 s{sT1}, s{sRB}, 16\nv_lshlrev_b32 v{vLANE16}, 4, v0")
    for jj in range(1, 16): E(f"s_add_u32 s{8 + jj}, s{7 + jj}, 64\ns_and_b32 s{8 + jj}, s{8 + jj}, 1023")
    E("s_waitcnt lgkmcnt(0)")
    def mk(sr, p, size):
        E(f"s_add_u32 s{sr}, s{p}, s{sT1}\ns_addc_u32 s{sr+1}, s{p+1}, 0\ns_sub_u32 s{sr+2}, {size}, s{sT1}\ns_mov_b32 s{sr+3}, 0x20000")
    mk(S_X, 64, 2048 * 1024)
    for jj in range(16):
        E(f"buffer_load_dwordx4 {vr(vX + 4 * jj)}, v{t[2]}, {srd(S_X)}, s{8 + jj} offen", ('x', jj))
    E(f"s_mul_i32 s{sT1}, s{sRB}, 37\ns_lshr_b32 s{sT1}, s{sT1}, 8\ns_mul_i32 s{sT1}, s{sT1}, 7\ns_sub_u32 s{sROT7}, s{sRB}, s{sT1}")
    E(f"s_mul_i32 s{sT1}, s{sG}, 448\ns_lshl_b32 s{sT2}, s{sW}, 7\ns_add_u32 s{sT1}, s{sT1}, s{sT2}\ns_lshl_b32 s{sT2}, s{sODD}, 6\ns_sub_u32 s{sT1}, s{sT1}, s{sT2}")
    mk(S_WG, 76, 512 * 3584); mk(S_WU, 78, 512 * 3584)
    E(f"s_lshl_b32 s{sT1}, s{sG}, 10\ns_lshl_b32 s{sT3}, s{sW}, 8\ns_add_u32 s{sT1}, s{sT1}, s{sT3}"); mk(S_WQ, 70, 512 * 8192)
    E(f"s_lshl_b32 s{sT1}, s{sG}, 19\ns_add_u32 s{sT1}, s{sT1}, s{sT3}"); mk(S_WO, 72, 4096 * 1024)
    E(f"s_mul_i32 s{sT1}, s{sG}, {224 * 1024}\ns_add_u32 s{sT1}, s{sT1}, s{sT3}"); mk(S_WD, 80, 1792 * 1024)
    E(f"s_lshl_b32 s{sT1}, s{sG}, 19"); mk(S_K, 66, 8 * 524288); mk(S_V, 68, 8 * 524288)
    E(f"s_mov_b32 s{S_K+2}, 524288\ns_mov_b32 s{S_V+2}, 524288")
    E(f"s_lshl_b32 s{sT1}, s{sG}, 5\ns_add_u32 s{sT1}, s{sT1}, s{sRB}\ns_lshl_b32 s{sT1}, s{sT1}, 2\ns_add_u32 s{sT1}, s{sT1}, s{sW}\ns_lshl_b32 s{sT1}, s{sT1}, 14")
    mk(S_WS, 86, 32 << 20)
    E(f"s_or_b32 s{sCAND}, s60, 1")
    E(f"s_mul_i32 s{sRING}, s{sW}, {RING}\ns_add_u32 s{sRING}, s{sRING}, {LDS_R}")
    for n in ('gu', 'q', 'd'):
        E(f"s_mul_i32 s{sOFF[n]}, s{sROT7 if n == 'd' else sROT}, {32 * GEMM[n]['stride']}")
    for k in range(4): E(f"s_add_u32 s{sOB + k}, s{sROT}, {k}\ns_and_b32 s{sOB + k}, s{sOB + k}, 3\ns_lshl_b32 s{sOB + k}, s{sOB + k}, 17")
    E(f"v_lshrrev_b32 v{t[3]}, 3, v0\nv_and_b32 v{t[4]}, 7, v0")
    E(f"v_and_b32 v{t[5]}, 1, v{t[1]}\nv_lshlrev_b32 v{t[5]}, 1, v{t[5]}\nv_xor_b32 v{t[5]}, v{t[5]}, v{t[4]}")
    E(f"v_lshlrev_b32 v{t[6]}, 1, v{t[1]}\nv_xor_b32 v{t[6]}, v{t[6]}, v{t[4]}")
    E(f"s_mul_i32 s{sT1}, s{sODD}, 3\ns_add_u32 s{sT1}, s{sT1}, s{sW}\ns_cmp_eq_u32 s{sT1}, 3\ns_cselect_b32 s{sT2}, 4, 0\ns_lshl_b32 s{sT3}, s{sODD}, 2")
    for n in ('gu', 'q', 'd'):
        st = GEMM[n]['stride']
        E(f"s_mov_b32 s{sT1}, {st}\nv_mul_lo_u32 v{t[7]}, s{sT1}, v{t[3]}")
        for i in range(4):
            d = vVO[n] + i
            if GEMM[n]['nat']: E(f"v_xor_b32 v{d}, {4 * (i % 2)}, v{t[5]}")
            else: E(f"v_mov_b32 v{d}, v{t[6]}")
            if n == 'gu': E(f"v_xor_b32 v{t[2]}, s{sT3}, v{d}\nv_and_b32 v{t[2]}, s{sT2}, v{t[2]}\nv_lshlrev_b32 v{t[2]}, 28, v{t[2]}")
            E(f"v_lshl_add_u32 v{d}, v{d}, 4, v{t[7]}\nv_add_u32 v{d}, {i * (8 * st - 1024)}, v{d}")
            if n == 'gu': E(f"v_add_u32 v{d}, v{d}, v{t[2]}")
    US = UnitStream(front_units(), lambda u: f"s_add_u32 m0, s{sRING}, {(u % 6) * 4096}")
    E(f"v_bfe_u32 v{t[2]}, v0, 2, 2\nv_and_b32 v{t[3]}, 3, v0")
    E(f"v_lshrrev_b32 v{t[4]}, 1, v{t[2]}\nv_and_b32 v{t[5]}, 1, v{t[1]}\nv_lshl_add_u32 v{t[4]}, v{t[5]}, 1, v{t[4]}")
    E(f"v_lshlrev_b32 v{t[4]}, 5, v{t[4]}\nv_lshl_add_u32 v{t[4]}, v{t[3]}, 3, v{t[4]}\nv_lshl_add_u32 v{t[4]}, v{t[2]}, 7, v{t[4]}\nv_add_u32 v{t[4]}, s{sRING}, v{t[4]}")
    E(f"v_lshl_add_u32 v{vANAT}, v{t[1]}, 10, v{t[4]}\nv_lshl_add_u32 v{vAACC}, v{t[1]}, 9, v{t[4]}")
    for b in range(1, 4):
        E(f"v_xor_b32 v{vANAT + b}, {b << 5}, v{vANAT}\nv_xor_b32 v{vAACC + b}, {b << 5}, v{vAACC}")
    E(f"v_lshrrev_b32 v{t[4]}, 1, v{t[1]}\nv_lshl_add_u32 v{t[4]}, v{t[5]}, 1, v{t[4]}")
    E(f"v_xor_b32 v{t[4]}, v{t[4]}, v{t[0]}\nv_lshlrev_b32 v{t[4]}, 4, v{t[4]}\nv_lshl_add_u32 v{t[4]}, v{t[0]}, 8, v{t[4]}\nv_add_u32 v{vKA}, {LDS_K0}, v{t[4]}")
    for j in range(1, 4): E(f"v_xor_b32 v{vKA + j}, {j << 6}, v{vKA}")
    E(f"v_lshl_add_u32 v{t[4]}, v{t[5]}, 2, v{t[2]}\nv_lshlrev_b32 v{t[4]}, 5, v{t[4]}\nv_lshl_add_u32 v{t[4]}, v{t[3]}, 3, v{t[4]}")
    E(f"v_lshl_add_u32 v{t[6]}, v{t[1]}, 2, v{t[2]}\nv_lshl_add_u32 v{t[4]}, v{t[6]}, 8, v{t[4]}\nv_add_u32 v{vVA}, {LDS_V0}, v{t[4]}")
    for db in range(1, 8): E(f"v_xor_b32 v{vVA + db}, {db << 5}, v{vVA}")
    for i in range(4):
        E(f"v_xor_b32 v{t[4]}, v{t[0]}, v{t[1]}\nv_xor_b32 v{t[4]}, {4 * i}, v{t[4]}\nv_lshlrev_b32 v{t[4]}, 4, v{t[4]}\nv_lshl_add_u32 v{vKD + i}, v{t[1]}, 8, v{t[4]}")
    for i in range(2):
        E(f"v_lshlrev_b32 v{t[4]}, 1, v{t[1]}\nv_xor_b32 v{t[4]}, v{t[4]}, v{t[0]}\nv_xor_b32 v{t[4]}, {8 * i}, v{t[4]}\nv_lshlrev_b32 v{t[4]}, 4, v{t[4]}\nv_lshl_add_u32 v{vVD + i}, v{t[1]}, 8, v{t[4]}")
    E(f"s_lshl_b32 s{sT1}, s{sW}, 12\ns_add_u32 s{sKM0}, s{sT1}, {LDS_K}\ns_add_u32 s{sVM0}, s{sT1}, {LDS_V}")
    E(f"s_cmp_lt_u32 s{sW}, 2\ns_cselect_b64 vcc, -1, 0\ns_cselect_b32 s{S_KV}, s{S_K}, s{S_V}\ns_cselect_b32 s{S_KV+1}, s{S_K+1}, s{S_V+1}")
    E(f"s_cselect_b32 s{sKVM}, 0, {LDS_V0 - LDS_K0}\ns_mov_b32 s{S_KV+2}, 524288\ns_mov_b32 s{S_KV+3}, 0x20000")
    E(f"s_and_b32 s{sT1}, s{sW}, 1\ns_lshl_b32 s{sT1}, s{sT1}, 12\ns_add_u32 s{sT1}, s{sT1}, {LDS_K0}\ns_add_u32 s{sKVM}, s{sKVM}, s{sT1}")
    for i in range(4): E(f"v_cndmask_b32 v{vD0 + i}, v{vVD + i % 2}, v{vKD + i}, vcc")
    att_offsets(C)
    for a in range(2):
        E(f"s_lshl_b32 s{sT1}, s{sW}, 1\ns_add_u32 s{sT1}, s{sT1}, {a}\ns_sub_u32 s{sT3}, s{sT1}, s{sODD}\ns_add_u32 s{sT1}, s{sT3}, 7\ns_sub_u32 s{sT1}, s{sT1}, s{sROT7}")
        E(f"s_cmp_ge_u32 s{sT1}, 7\ns_cselect_b32 s{sT2}, 7, 0\ns_sub_u32 s{sT1}, s{sT1}, s{sT2}\ns_cmp_ge_u32 s{sT3}, 7\ns_cselect_b32 s{sT1}, 7, s{sT1}")
        E(f"s_lshl_b32 s{sT1}, s{sT1}, 12\nv_add_u32 v{vHA + a}, s{sT1}, v{vLANE16}")
    E(f"s_sub_u32 s{sT1}, s{sW}, s{sROT}\ns_and_b32 s{sT1}, s{sT1}, 3\ns_lshl_b32 s{sT1}, s{sT1}, 12\ns_add_u32 s{sT1}, s{sT1}, {LDS_O}")
    E(f"v_add_u32 v{vOA}, s{sT1}, v{vLANE16}\nv_add_u32 v{vOB}, {LDS_O}, v{vLANE16}")
    E(f"s_lshl_b32 s{sM0A}, s{sW}, 14\ns_lshl_b32 s{sM0B}, s{sW}, 12\ns_add_u32 s{sM0B}, s{sM0B}, {LDS_FLAG}")
    E(f"v_mov_b32 v{t[4]}, 0x3f803f80")
    for i in range(4): E(f"v_accvgpr_write_b32 a{aONE + i}, v{t[4]}")
    for i in range(4): E(f"v_mov_b32 v{vMT + i}, 0xff800000")
    E(f"s_mov_b32 s{sREDO}, 0\ns_mov_b32 s{sCQ}, {f32(CQ)}")
    E(f"s_lshl_b32 s{sT1}, s{sRB}, 2\ns_add_u32 s{sT1}, s{sT1}, s{sW}\ns_lshl_b32 s{sT3}, s{sW}, 8")
    E(f"s_lshl_b32 s{sT2}, s{sT1}, 12\nv_lshlrev_b32 v59, 6, v0\nv_add_u32 v59, s{sT2}, v59\nv_subrev_u32 v58, s{sT3}, v59")
    stamp(C, 0)
    m, q = 192, 196
    for jj in range(16):
        E(f"s_waitcnt vmcnt({C.vm.need(('x', jj))})")
        x = vr(vX + 4 * jj)
        E(mfma(vr(m), ar(aONE), x, vr(m) if jj else "0"))
        it = US.next() if jj < OPT['paced'] else None
        if it:
            for p in it[0]: E(p)
        E(mfma(vr(q), x, x, vr(q) if jj else "0"))
        if it:
            E(it[1], it[3])
            for p in it[2]: E(p)
    stamp(C, 1)
    E(f"v_mul_f32 v{m}, {f32(1 / 512)}, v{m}")
    for r in range(1, 4): E(f"v_cmp_eq_u32 vcc, {r}, v{t[3]}\nv_cndmask_b32 v{q}, v{q}, v{q + r}, vcc")
    E(f"v_cmp_eq_u32 vcc, v{t[2]}, v{t[1]}\nv_cndmask_b32 v{q}, 0, v{q}, vcc")
    xlane(C, "v_add_f32", q, q + 1)
    rb16 = lambda x: f"v_cvt_pk_bf16_f32 v{x}, v{x}, v{x}\nv_lshlrev_b32 v{x}, 16, v{x}"
    E(f"v_mul_f32 v{q}, {f32(1 / 512)}, v{q}\nv_fma_f32 v{q}, -v{m}, v{m}, v{q}\nv_max_f32 v{q}, 0, v{q}"); E(rb16(q))
    E(f"v_add_f32 v{q}, {f32(1e-5)}, v{q}"); E(rb16(q))
    E(f"v_sqrt_f32 v{q}, v{q}"); E(rb16(q)); E(rb16(m))
    E(f"v_rcp_f32 v{q}, v{q}\ns_lshl_b32 s{sT1}, s{sW}, 10\nv_mul_f32 v{q}, s{sCQ}, v{q}\nv_mul_f32 v{m}, v{m}, v{q}\nv_add_u32 v{t[4]}, s{sT1}, v{vLANE16}")
    for jj in range(16):
        for r in range(4):
            x = vX + 4 * jj + r; a, b = 206 + 2 * (r % 2), 207 + 2 * (r % 2)
            E(f"v_lshlrev_b32 v{a}, 16, v{x}\nv_and_b32 v{b}, 0xffff0000, v{x}")
            if r % 2:
                for a, xx in ((206, x - 1), (208, x)): E(f"v_pk_fma_f32 v[{a}:{a + 1}], v[{a}:{a + 1}], v[{q}:{q + 1}], v[{m}:{m + 1}] op_sel_hi:[1,0,0] neg_lo:[0,0,1] neg_hi:[0,0,1]")
                for a, xx in ((206, x - 1), (208, x)): E(f"v_cvt_pk_bf16_f32 v{xx}, v{a}, v{a + 1}")
        E(f"ds_write_b128 v{t[4]}, {vr(vX + 4 * jj)} offset:{LDS_A + jj * 4096}")
    E("s_waitcnt lgkmcnt(0)\ns_barrier")
    stamp(C, 2)
    F1 = Fill(128, 128 + 118)
    hw = lambda a, tb: f"ds_write_b128 v{vHA + a}, {vr(vQ + (a * 4 + tb) * 4)} offset:{LDS_A + tb * 1024}"
    for a in range(2):
        for tb in range(4):
            for nb in (2 * a, 2 * a + 1):
                gq, uq = vX + (nb * 4 + tb) * 4, vX + ((nb + 4) * 4 + tb) * 4
                for r in range(4): F1.add('p', f"v_mul_f32 v{gq + r}, {f32(-LOG2E / CQ)}, v{gq + r}")
                for r in range(4): F1.add('t', f"v_exp_f32 v{gq + r}, v{gq + r}")
                for r in range(4): F1.add('p', f"v_fma_f32 v{gq + r}, v{gq + r}, s{sCQ}, s{sCQ}")
                for r in range(4): F1.add('t', f"v_rcp_f32 v{gq + r}, v{gq + r}")
                for r in range(4): F1.add('p', f"v_mul_f32 v{gq + r}, v{gq + r}, v{uq + r}")
                h = vQ + (a * 4 + tb) * 4 + 2 * (nb % 2)
                F1.add('p', f"v_cvt_pk_bf16_f32 v{h}, v{gq}, v{gq + 1}\nv_cvt_pk_bf16_f32 v{h + 1}, v{gq + 2}, v{gq + 3}")
    F2 = Fill(257, 256 + 56)
    for k, (qb, j) in enumerate((qb, j) for qb in range(4) for j in range(4)):
        lo, hi, d = aO + (2 * j * 4 + qb) * 4, aO + ((2 * j + 1) * 4 + qb) * 4, vQ + (qb * 4 + j) * 4
        for hh, src in enumerate((lo, hi)):
            for r in range(4): F2.add('p', f"v_accvgpr_read_b32 v{t[4 * hh + r]}, a{src + r}")
        if k: F2.add('p', prev)
        F2.add('p', f"v_cvt_pk_bf16_f32 v{d}, v{t[0]}, v{t[1]}\nv_cvt_pk_bf16_f32 v{d + 2}, v{t[4]}, v{t[5]}")
        F2.add('p', f"v_cvt_pk_bf16_f32 v{d + 1}, v{t[2]}, v{t[3]}\nv_cvt_pk_bf16_f32 v{d + 3}, v{t[6]}, v{t[7]}")
        prev = f"v_permlane16_swap_b32 v{d}, v{d + 2}\nv_permlane16_swap_b32 v{d + 1}, v{d + 3}"
    F2.add('p', prev)
    bursts = {128 + 71: [(hw(0, tb), 'h') for tb in range(4)], 128 + 119: [(hw(1, tb), 'h') for tb in range(4)]}
    if OPT['kvearly']:
        fp = first_pieces()
        bursts[128 + 127] = [(fp[0][0][0], None), ("s_nop 0", None)] + [(x[1], 'kv0') for x in fp[:4]]
        bursts[256 + 7] = [(fp[4][0][0], None), ("s_nop 0", None)] + [(x[1], 'kv0') for x in fp[4:]] + [(x, None) for x in fp[7][2]]
    else: US.after = first_pieces()
    groups = front_groups('gu', 0, xacc, 'q') + front_groups('q', 32, lambda nb, tb: ar(aO + (nb * 4 + tb) * 4), 'd') + front_groups('d', 64, xacc, None)
    run_gemm(C, groups, US, [F1, F2], bars={128 + 61: None, 128 + 120: 'h'}, marks={128: 3, 256: 4}, bursts=bursts)
    stamp(C, 5)
    flush(C, F2)
    E(f"s_waitcnt vmcnt({C.vm.need('kv0')})\ns_barrier")
    for n in range(8): E(kread(ar(aPre(n)), n % 4, (n // 4) * 4096)[0], ('k0', n))
    E(f"s_lshl_b32 s{sT1}, s{sW}, 12\nv_add_u32 v{vDA}, s{sT1}, v{vLANE16}")
    F = Fill()
    for a in range(4):
        for tb in range(4):
            lo = vX + ((2 * a) * 4 + tb) * 4; hi = lo + 16
            for r, x in enumerate((lo, lo + 2, hi, hi + 2)): F.add('p', f"v_cvt_pk_bf16_f32 v{lo + r}, v{x}, v{x + 1}")
            if a < 2: F.add('w', f"ds_write_b128 v{vDA}, {vr(lo)} offset:{LDS_A + a * 16384 + tb * 1024}")
            else:
                for r in range(4): F.add('p', f"v_accvgpr_write_b32 a{aD + ((a - 2) * 4 + tb) * 4 + r}, v{lo + r}")
        if a == 0: flush(C, F)
    t1 = [(p, d, q_, 't1') for p, d, q_, _ in tile_dma('k', 1) + tile_dma('v', 1)]
    for n in range(8):
        E(f"s_waitcnt lgkmcnt({C.lg.need(('k0', n))})")
        for qb in range(4):
            E(qk_mfma(n, qb, vS[0], ar(aPre(n)), zero=True))
            if qb == 0: emit_dmas(C, [t1.pop(0)]); continue
            room = 3
            while F.q and room > 0:
                kind, text, tag = F.q.pop(0); E(text, tag); room -= F.W[kind]
    flush(C, F)
    E(f"s_sub_u32 s{sT1}, s{sM0A}, s{sRING}\ns_sub_u32 s{sT2}, s{sM0B}, s{sM0A}")
    for b in range(4): E(f"v_add_u32 v{vAACC + b}, s{sT1}, v{vAACC + b}")
    for b in range(4): E(f"v_add_u32 v{vANAT + b}, s{sT2}, v{vAACC + b}")
    A("L_max:")
    for x in group_reads(0, 8192, 0) + group_reads(1, 8192, 0): E(x)
    for qb in range(4):
        x, y, mm = vS[0] + qb * 4, vS[0] + (4 + qb) * 4, vE + qb
        E(f"v_max3_f32 v{mm}, v{x}, v{x+1}, v{vMT + qb}\nv_max3_f32 v{mm}, v{x+2}, v{x+3}, v{mm}\nv_max3_f32 v{mm}, v{y}, v{y+1}, v{mm}\nv_max3_f32 v{mm}, v{y+2}, v{y+3}, v{mm}")
    for op in ("v_permlane32_swap_b32", "v_permlane16_swap_b32"):
        for qb in range(4): E(f"v_mov_b32 v{vE + 4 + qb}, v{vE + qb}")
        for qb in range(4): E(f"{op} v{vE + qb}, v{vE + 4 + qb}")
        for qb in range(4): E(f"v_max_f32 v{vE + qb}, v{vE + qb}, v{vE + 4 + qb}")
    for qb in range(4):
        for r in range(4): E(f"v_sub_f32 v{vNM + 4 * qb + r}, 0, v{vE + qb}")
    for qb in range(4):
        x, y = vS[0] + qb * 4, vS[0] + (4 + qb) * 4
        for r in range(4): E(f"v_sub_f32 v{x + r}, v{x + r}, v{vE + qb}\nv_sub_f32 v{y + r}, v{y + r}, v{vE + qb}")
    E(f"s_mov_b32 s{sIT}, 0\ns_waitcnt lgkmcnt(1)")
    stamp(C, 6)
    step(C, 0, 8192, 0, [group_reads(0, 16384, 0), group_reads(1, 16384, 0)], [], pv=False)
    ext = {8 + j: [f"v_add_u32 v{vKA + j}, {LDS_K - LDS_K0}, v{vKA + j}"] for j in range(4)}
    for db in range(8): ext.setdefault(min(8 + db, 15) if db > 1 else 7 + db, []).append(f"v_add_u32 v{vVA + db}, {LDS_V - LDS_V0}, v{vVA + db}")
    wt = [([], f"buffer_load_dword v57, v58, {srd(S_WO)}, 0 offen", [], None)] if OPT['wotouch'] else []
    step(C, 1, 16384, 0, [group_reads(0, 16384, 0), group_reads(1, 16384, 0)], [(p, d, q_, ('t', 2)) for p, d, q_, _ in tile_dma('k', 2) + tile_dma('v', 2)] + wt,
         sync=lambda: C.vm.need('t1'), zero=True, extra=ext)
    if OPT['fused']:
        E(f"s_or_b32 s{sT1}, s2, s{sW}\ns_cmp_eq_u32 s{sT1}, 0\ns_cbranch_scc0 L_notok\nv_mov_b32 v{t[0]}, s{sCAND}\nv_mov_b32 v{t[1]}, 0\ns_mov_b64 exec, 1")
        A(f"global_atomic_cmpswap v{t[1]}, v[{t[0]}:{t[1]}], s[84:85] sc1\ns_mov_b64 exec, -1\nL_notok:")
    for k in range(8): E(f"ds_write_b128 v{vDA}, {ar(aD + 4 * k)} offset:{LDS_A + 32768 + (k // 4) * 16384 + (k % 4) * 1024}")
    E(f"s_mov_b32 s{S_DS}, s{S_WS}\ns_mov_b32 s{S_DS + 1}, s{S_WS + 1}\ns_mov_b32 s{S_DS + 3}, 0x20000\ns_mov_b32 s{sDOFF}, 0")
    E(f"s_cmp_eq_u32 s{sREDO}, 0\ns_cselect_b32 s{S_DS + 2}, 16384, 0\ns_or_b32 s{sT1}, s{sREDO}, s{sW}\ns_cmp_eq_u32 s{sT1}, 0\ns_cselect_b32 s{sTRIG}, 5, -1")
    E("s_waitcnt lgkmcnt(0)")
    stamp(C, 7)
    A(".p2align 6\nL_loop:")
    iteration(C, 0); iteration(C, 1)
    iteration(C, 2, tail=(f"s_add_u32 s{sIT}, s{sIT}, 1", f"s_cmp_lt_u32 s{sIT}, 10", "s_cbranch_scc1 L_loop"),
              hook=(f"s_cmp_eq_u32 s{sIT}, s{sTRIG}", "s_cbranch_scc1 L_dready", "L_dback:") if OPT['fused'] else ())
    C.vm.tag['t32'] = C.vm.n
    stamp(C, 8)
    UO = UnitStream(o_units(), lambda u: f"s_add_u32 m0, s{sM0A if u % 6 < 4 else sM0B}, {(u % 6) * 4096 if u % 6 < 4 else (5 - u % 6) * 16384}")
    E(o_off(0))
    if OPT['fused']:
        E(f"s_lshl_b32 s{sT1}, s{sRB}, 2\nv_mov_b32 v{t[1]}, 0\nv_mov_b32 v{t[3]}, s{sT1}")
        A(f"global_load_dword v{t[0]}, v{t[1]}, s[84:85] sc1\nglobal_load_dword v{t[2]}, v{t[3]}, s[84:85] offset:128 sc1"); C.vm.issue(); C.vm.issue('t32')
        slice_srd(C, S_DP, sG)
    step(C, 0, 16384, 16384, [vread(aF, 0, 16384 + 8192), vread(aF + 4, 1, 16384 + 8192)], [UO.next() for _ in range(12)])
    step(C, 1, 0, 16384 + 8192, [vread(aF, 0, 32768), vread(aF + 4, 1, 32768)], [], sync=lambda: C.vm.need('t32'), qk=False)
    dl = []
    if OPT['fused']:
        E(f"v_readfirstlane_b32 s{sT1}, v{t[2]}\ns_nop 0\ns_cmp_eq_u32 s{sT1}, {8 if OPT['early'] else 99}\ns_cselect_b32 s{sEARLY}, 1, 0\ns_cselect_b32 s{S_DP + 2}, s{S_DP + 2}, 0")
        dl = [([f"s_mov_b32 s{sST}, {(k // 2) << 21}"] if k % 2 == 0 else [], f"buffer_load_dwordx4 {ar(aD + 4 * k)}, v{vLANE16}, {srd(S_DP)}, s{sST} offen offset:{(k % 2) * 1024} sc1", [], 'dl') for k in range(16)]
    for qb in range(4): E(sum_mfma(qb, vP[1]))
    for n in range(8, 16):
        rd = vread(aF + 4 * ((n + 2) % 4), n + 2 - 8, 32768) if n + 2 < 16 else []
        for qb in range(4):
            E(pv_mfma(n, qb, vP[1]))
            if qb == 0:
                for x in rd: E(x)
            if qb == 1 and n < 12 and OPT['wo3']: emit_dmas(C, [UO.next()])
            if qb in (1, 2) and n >= 12 and dl: emit_dmas(C, [dl.pop(0)], nop=False)
            if qb == 2 and n >= 12: E(f"v_accvgpr_read_b32 v{vE + n - 12}, a{aL + 4 * (n - 12)}")
            if qb == 3 and n < 15: E(f"s_waitcnt lgkmcnt({len(rd)})")
    stamp(C, 9)
    E(f"s_mov_b32 s{sT1}, {f32(2.0 ** OPT['thr'])}\nv_mov_b32 v{vE + 4}, 0")
    for qb in range(4): E(f"v_cmp_nlt_f32 vcc, v{vE + qb}, s{sT1}\nv_rcp_f32 v{vE + qb}, v{vE + qb}\nv_cndmask_b32 v{vE + 4}, v{vE + 4}, 1, vcc")
    E(f"s_lshl_b32 s{sT1}, s{sW}, 8\ns_add_u32 s{sT1}, s{sT1}, {LDS_FLAG}\nv_lshl_add_u32 v{vE + 5}, v0, 2, s{sT1}")
    for w in range(4): E(f"ds_write_b32 v{vE + 5}, v{vE + 4} offset:{4096 * w}")
    for a in range(4):
        for qb in range(4):
            b = vS[0] + qb * 16
            for hh in range(2):
                for r in range(4): E(f"v_accvgpr_read_b32 v{b + 4 * hh + r}, a{aO + ((2 * a + hh) * 4 + qb) * 4 + r}")
            rl = vE + (qb & ~1); sel = qb & 1
            if not OPT['pk']:
                for r in range(8): E(f"v_mul_f32 v{b + r}, v{b + r}, v{vE + qb}")
            for r in (range(0, 8, 2) if OPT['pk'] else ()): E(f"v_pk_mul_f32 v[{b + r}:{b + r + 1}], v[{b + r}:{b + r + 1}], v[{rl}:{rl + 1}] op_sel:[0,{sel}] op_sel_hi:[1,{sel}]")
            for r in range(4): E(f"v_cvt_pk_bf16_f32 v{b + 8 + r}, v{b + 2 * r}, v{b + 2 * r + 1}")
            E(f"ds_write_b128 v{vOA}, {vr(b + 8)} offset:{a * 16384 + qb * 1024}")
            if dl: emit_dmas(C, [dl.pop(0)], nop=False)
    E(f"v_lshl_add_u32 v{vE + 5}, v0, 2, s{sM0B}\ns_waitcnt lgkmcnt(0)\ns_barrier")
    for w in range(4): E(f"ds_read_b32 v{vE + 6 + w}, v{vE + 5} offset:{256 * w}")
    E(f"s_waitcnt lgkmcnt(0)\nv_or_b32 v{vE + 6}, v{vE + 6}, v{vE + 7}\nv_or3_b32 v{vE + 6}, v{vE + 6}, v{vE + 8}, v{vE + 9}")
    E(f"v_cmp_ne_u32 vcc, 0, v{vE + 6}\ns_cmp_eq_u32 s{sREDO}, 0\ns_cselect_b64 s[{sC0}:{sC1}], vcc, 0\ns_cmp_lg_u64 s[{sC0}:{sC1}], 0\ns_cbranch_scc1 L_slow")
    stamp(C, 10)
    Fs = [Fill(113, 128), Fill()]
    for a in range(4): pack_store(Fs[a // 2], a, [f"s_mov_b32 s{sST}, {(16 << 20) + a * 4096}"])
    FG = Fill(16, 112)
    if OPT['fused']:
        for f in range(2):
            d = vG + 8 * f
            for k in range(8):
                for r in range(4):
                    x = vG + 16 + 4 * (r % 2) + 8 * (k % 2); a = d + 2 * r if k == 0 else x + 1
                    FG.add('p', f"v_accvgpr_read_b32 v{x}, a{aD + 4 * (2 * k + f) + r}\nv_lshlrev_b32 v{a}, 16, v{x}\nv_and_b32 v{a + 1}, 0xffff0000, v{x}")
                    if k: FG.add('p', f"v_add_f32 v{d + 2 * r}, v{d + 2 * r}, v{a}\nv_add_f32 v{d + 2 * r + 1}, v{d + 2 * r + 1}, v{a + 1}")
            silu(FG.add, d, vG + 32)
    run_gemm(C, o_groups(), UO, [FG, Fs[0]], after_tag={16: 'dl'} if OPT['fused'] else None)
    stamp(C, 11)
    flush(C, Fs[0]); flush(C, Fs[1])
    if OPT['fused']: tail(C)
    if OPT['dbg']:
        E(f"s_waitcnt vmcnt(0)\ns_memrealtime s[100:101]\ns_waitcnt lgkmcnt(0)\ns_sub_u32 s100, s100, s96\ns_cmp_lt_u32 s2, 12\ns_cbranch_scc0 L_end\ns_cmp_eq_u32 s{sW}, 0\ns_cbranch_scc0 L_end")
        E("s_lshl_b32 s4, s2, 2\nv_mov_b32 v2, s4\nv_mov_b32 v3, s100\ns_mov_b64 exec, 1\nglobal_store_dword v2, v3, s[84:85] offset:8")
    if OPT['stamps']:
        E("s_waitcnt vmcnt(0)"); stamp(C, 14 if OPT['fused'] else 12)
        E(f"s_memrealtime s[100:101]\ns_waitcnt lgkmcnt(0)\nv_writelane_b32 v55, s100, 18\nv_writelane_b32 v55, s96, 17\nv_writelane_b32 v55, s98, 16")
        E(f"s_load_dwordx2 s[4:5], s[0:1], 88\ns_waitcnt lgkmcnt(0)\ns_add_u32 s4, s4, {64 << 20}\ns_addc_u32 s5, s5, 0\ns_mov_b32 s6, 0x100000\ns_mov_b32 s7, 0x20000")
        E(f"s_lshl_b32 s{sT1}, s2, 2\ns_add_u32 s{sT1}, s{sT1}, s{sW}\ns_lshl_b32 s{sT1}, s{sT1}, 8\nv_lshlrev_b32 v2, 2, v0\nbuffer_store_dword v55, v2, s[4:7], s{sT1} offen")
    A("L_end:\ns_endpgm")
    if OPT['fused']:
        A("L_dready:")
        E(f"s_lshl_b32 s{sT1}, s{sRB}, 2\nv_mov_b32 v{t[0]}, s{sT1}\nv_mov_b32 v{t[1]}, 1\ns_mov_b64 exec, 1")
        A(f"global_atomic_add v{t[0]}, v{t[1]}, s[84:85] offset:128 sc1\ns_mov_b64 exec, -1\ns_branch L_dback")
    A("L_slow:")
    E(f"s_waitcnt vmcnt(0)\ns_mov_b32 s{sREDO}, 1\ns_mov_b32 s{sIT}, 0\ns_lshl_b32 s{sKOFF}, s{sW}, 12\ns_mov_b32 m0, s{sKM0}")
    A("L_slow_loop:")
    E("s_barrier")
    for i in range(4): E(kdma(i))
    E(f"s_add_u32 s{sKOFF}, s{sKOFF}, 16384\ns_waitcnt vmcnt(0)\ns_barrier")
    for kb in range(4):
        for j in range(4): E(kread(ar(aPre(j)), j, kb * 4096)[0])
        E("s_waitcnt lgkmcnt(0)")
        for j in range(4):
            for qb in range(4): E(qk_mfma(j, qb, vS[0], ar(aPre(j)), zero=True))
        for qb in range(4):
            x = vS[0] + qb * 4
            E(f"v_max3_f32 v{vMT + qb}, v{x}, v{x+1}, v{vMT + qb}\nv_max3_f32 v{vMT + qb}, v{x+2}, v{x+3}, v{vMT + qb}")
    E(f"s_add_u32 s{sIT}, s{sIT}, 1\ns_cmp_lt_u32 s{sIT}, 32\ns_cbranch_scc1 L_slow_loop\ns_barrier")
    for j in range(4): E(f"v_subrev_u32 v{vKA + j}, {LDS_K - LDS_K0}, v{vKA + j}")
    for db in range(8): E(f"v_subrev_u32 v{vVA + db}, {LDS_V - LDS_V0}, v{vVA + db}")
    att_offsets(C)
    E(f"s_lshl_b32 s{sT1}, s{sW}, 12\nv_add_u32 v{vDA}, s{sT1}, v{vLANE16}")
    emit_dmas(C, first_pieces() + tile_dma('k', 1) + tile_dma('v', 1))
    E("s_waitcnt vmcnt(0)\ns_barrier")
    for n in range(8): E(kread(ar(aPre(n)), n % 4, (n // 4) * 4096)[0])
    E("s_waitcnt lgkmcnt(0)")
    for n in range(8):
        for qb in range(4): E(qk_mfma(n, qb, vS[0], ar(aPre(n)), zero=True))
    E("s_nop 7\ns_branch L_max")
    return A

def final_kernel():
    A = Asm()
    A("final_kernel:")
    A("s_cmp_ge_u32 s2, 256\ns_cbranch_scc1 L_fend")
    if OPT['stamps']: A("s_memrealtime s[30:31]")
    A("s_load_dwordx2 s[20:21], s[0:1], 0\ns_load_dwordx2 s[22:23], s[0:1], 72\ns_load_dwordx2 s[24:25], s[0:1], 88")
    A("v_lshrrev_b32 v1, 6, v0\nv_and_b32 v0, 63, v0\nv_readfirstlane_b32 s3, v1")
    A("s_lshr_b32 s16, s2, 3\ns_and_b32 s17, s2, 7")
    A("s_lshl_b32 s17, s17, 3\ns_lshl_b32 s3, s3, 1\ns_add_u32 s17, s17, s3")
    A("s_lshl_b32 s18, s16, 16\ns_lshl_b32 s19, s17, 10\ns_add_u32 s18, s18, s19")
    A("v_lshlrev_b32 v1, 4, v0\ns_waitcnt lgkmcnt(0)")
    A(f"s_add_u32 s4, s24, s18\ns_addc_u32 s5, s25, 0\ns_sub_u32 s6, {32 << 20}, s18\ns_mov_b32 s7, 0x20000")
    A(f"s_mov_b32 s8, s20\ns_mov_b32 s9, s21\ns_mov_b32 s10, {2 << 20}\ns_mov_b32 s11, 0x20000")
    A(f"s_mov_b32 s12, s22\ns_mov_b32 s13, s23\ns_mov_b32 s14, {2 << 20}\ns_mov_b32 s15, 0x20000")
    A("s_mov_b32 s26, 0")
    for k in range(16):
        for f in range(2): A(f"buffer_load_dwordx4 {vr(16 + (f * 16 + k) * 4)}, v1, s[4:7], s26 offen offset:{f * 1024}")
        if k < 15: A(f"s_add_u32 s26, s26, {2 << 20}")
    A("s_and_b32 s27, s17, 3\ns_lshl_b32 s27, s27, 4\ns_lshl_b32 s28, s16, 6\ns_add_u32 s27, s27, s28\ns_lshl_b32 s27, s27, 10")
    A("s_lshr_b32 s28, s17, 2\ns_lshl_b32 s28, s28, 6\ns_add_u32 s27, s27, s28")
    A("v_and_b32 v2, 15, v0\nv_lshrrev_b32 v3, 4, v0\nv_lshlrev_b32 v2, 10, v2\nv_lshl_add_u32 v2, v3, 3, v2\nv_add_u32 v2, s27, v2\nv_add_u32 v3, 16384, v2")
    for f in range(2):
        A(f"buffer_load_dwordx2 {vr(4 + 4 * f, 2)}, v{2 + f}, s[8:11], 0 offen\nbuffer_load_dwordx2 {vr(6 + 4 * f, 2)}, v{2 + f}, s[8:11], 0 offen offset:32")
    acc = lambda f, kind: 144 + (f * 2 + kind) * 8
    for k in range(16):
        for f in range(2):
            A(f"s_waitcnt vmcnt({35 - 2 * k - f})")
            src = 16 + (f * 16 + k) * 4; d = acc(f, k // 8)
            for r in range(4):
                if k % 8 == 0:
                    A(f"v_lshlrev_b32 v{d + 2 * r}, 16, v{src + r}\nv_and_b32 v{d + 2 * r + 1}, 0xffff0000, v{src + r}")
                else:
                    A(f"v_lshlrev_b32 v12, 16, v{src + r}\nv_and_b32 v13, 0xffff0000, v{src + r}\nv_add_f32 v{d + 2 * r}, v{d + 2 * r}, v12\nv_add_f32 v{d + 2 * r + 1}, v{d + 2 * r + 1}, v13")
    A("s_waitcnt vmcnt(0)")
    for f in range(2):
        d, s = acc(f, 0), acc(f, 1)
        for e in range(8): A(f"v_mul_f32 v{16 + e}, {f32(-math.log2(math.e))}, v{d + e}")
        for e in range(8): A(f"v_exp_f32 v{16 + e}, v{16 + e}")
        for e in range(8): A(f"v_add_f32 v{16 + e}, 1.0, v{16 + e}")
        for e in range(8): A(f"v_rcp_f32 v{16 + e}, v{16 + e}")
        for e in range(8): A(f"v_mul_f32 v{d + e}, v{d + e}, v{16 + e}")
        for r in range(4):
            x = 4 + 4 * f + r
            A(f"v_lshlrev_b32 v12, 16, v{x}\nv_and_b32 v13, 0xffff0000, v{x}")
            A(f"v_fma_f32 v12, v{s + 2 * r}, v{d + 2 * r}, v12\nv_fma_f32 v13, v{s + 2 * r + 1}, v{d + 2 * r + 1}, v13\nv_cvt_pk_bf16_f32 v{x}, v12, v13")
        A(f"buffer_store_dwordx2 {vr(4 + 4 * f, 2)}, v{2 + f}, s[12:15], 0 offen\nbuffer_store_dwordx2 {vr(6 + 4 * f, 2)}, v{2 + f}, s[12:15], 0 offen offset:32")
    if OPT['stamps']:
        A(f"s_waitcnt vmcnt(0)\ns_memrealtime s[32:33]\ns_waitcnt lgkmcnt(0)\ns_add_u32 s4, s24, {65 << 20}\ns_addc_u32 s5, s25, 0\ns_mov_b32 s6, 0x100000")
        A("s_lshl_b32 s26, s2, 3\nv_mov_b32 v2, 0\nv_mov_b32 v4, s30\nv_mov_b32 v5, s32\nbuffer_store_dwordx2 v[4:5], v2, s[4:7], s26 offen")
    A("L_fend:\ns_endpgm")
    return A

def descriptor(name, vg, acc, sg=102):
    return (f".amdhsa_kernel {name}\n  .amdhsa_next_free_vgpr {vg}\n  .amdhsa_next_free_sgpr {sg}\n  .amdhsa_accum_offset {acc}\n"
            f"  .amdhsa_group_segment_fixed_size 0\n  .amdhsa_kernarg_size 96\n  .amdhsa_user_sgpr_count 2\n"
            f"  .amdhsa_user_sgpr_kernarg_segment_ptr 1\n  .amdhsa_system_sgpr_workgroup_id_x 1\n"
            f"  .amdhsa_float_denorm_mode_32 3\n.end_amdhsa_kernel\n")

def build(verbose=False):
    head = [l for l in open(f"cdna_kernels/{NAME}.s.ref").read().split("\n") if l.startswith(";") and "@launch" not in l and "Override launch" not in l and "grid=ceil" not in l]
    out = "\n".join(head) + "\n"
    if OPT['fused']:
        out += f"; @launch grid=(256,1,1) block=(256,1,1) lds={LDS_TOTAL}\n"
        kernels = [(NAME + "_kernel", main_kernel, (512, 256))]
    else:
        out += f"; @launch kernel=main_kernel grid=(256,1,1) block=(256,1,1) lds={LDS_TOTAL}\n"
        out += "; @launch kernel=final_kernel grid=(256,1,1) block=(256,1,1) lds=0\n"
        kernels = [("main_kernel", main_kernel, (512, 256)), ("final_kernel", final_kernel, (176, 176, 40))]
    out += '.amdgcn_target "amdgcn-amd-amdhsa--gfx950"\n.text\n'
    for name, fn, _ in kernels:
        A = fn(); A.fix_hazards(verbose)
        out += f".globl {name}\n.p2align 8\n.type {name},@function\n" + A.text()
    out += '.section .rodata,"a"\n'
    for name, _, d in kernels: out += ".p2align 6\n" + descriptor(name, *d)
    return out

if __name__ == "__main__":
    dst = sys.argv[1] if len(sys.argv) > 1 else f"cdna_kernels/{NAME}.s"
    for a in sys.argv[2:]:
        k, v = a.split("="); OPT[k] = int(v)
    open(dst, "w").write(build(verbose=True))
```

```python
import math, struct, sys
from asmlib import Asm, Ins

NAME = "recurrent_scan__gqa_block_cached__glu_gated_glu__prompt"
OPT = dict(stamps=0, thr=30, room1=1, wotouch=1, paced=0, kvearly=0, kvst=0, pk=1, wo3=1, fused=1, limit=4096, dropflag=-1, early=1, dbg=0, xds=0, per=2, sleep=1, quart=0, h0=12, singles=20, mask=0)

def f32(x): return "0x%08x" % struct.unpack("<I", struct.pack("<f", x))[0]
def vr(b, n=4): return f"v[{b}:{b+n-1}]"
def ar(b, n=4): return f"a[{b}:{b+n-1}]"
def mfma(d, a, b, c): return f"v_mfma_f32_16x16x32_bf16 {d}, {a}, {b}, {c}"
LOG2E = math.log2(math.e)
CQ = LOG2E / math.sqrt(128.0)

LDS_A = 0
LDS_R = 65536
RING = 24576
LDS_K, LDS_V = LDS_R, LDS_R + 49152
LDS_K0, LDS_K1, LDS_V0 = 32768, 40960, 57344
LDS_O = LDS_R
LDS_FLAG = LDS_R + 65536
LDS_TOTAL = 163840

S_X, S_K, S_V, S_WQ, S_WO, S_WG, S_WU, S_WD, S_WS, S_KV = 4, 8, 12, 16, 20, 24, 28, 32, 36, 88
sG, sRB, sW, sROT, sROT7, sRING = 40, 41, 42, 43, 44, 45
sOFF = {'gu': 64, 'q': 66, 'd': 68, 'o': 46}
sWR, sOB = 48, 70
sTMP, sT1, sT2, sT3 = 50, 51, 52, 53
sKOFF, sVOFF, sKM0, sVM0, sIT, sREDO = 54, 55, 56, 57, 58, 59
sC0, sC1, sCQ, sODD = 60, 61, 62, 63
sM0A, sM0B, sKV0, sKVM = 92, 93, 94, 95
sST = 3
S_DS, S_DP = S_WG, S_WU
sDOFF, sTRIG, sEARLY, sDPN = 64, 65, 66, 63
sCAND, sTOK, sJ, sREADY, sLOADED, sRAW, sAB, sCNT, sGONE, sTODO, s16K = 74, 75, 8, 9, 10, 11, 88, 89, 49, 47, 90
def srd(b): return f"s[{b}:{b+3}]"

vLANE16 = 1
vT = list(range(2, 10))
vANAT, vAACC = 10, 14
vVO = {'gu': 18, 'q': 22, 'd': 26, 'o': 26}
vD0 = 30
vKA, vVA, vKD, vVD = 34, 38, 46, 50
vHA, vOB, vOA, vMT = 52, 54, 56, 60
vDA = 18
vQ, vX = 64, 128
vS = [128, 160]; vP = 192; vNM = 224; vE = 240
vIDX = 19
aF, aB, aONE, aL, aO = 0, 16, 108, 112, 128
def aPre(n): return 4 * n if n < 4 else 80 + 4 * (n - 4)
aB2 = 80
aD = 16

GEMM = {
    'gu': dict(nk=16, stride=3584, nat=True),
    'q':  dict(nk=16, stride=8192, nat=True),
    'd':  dict(nk=7, stride=1024, nat=False),
    'o':  dict(nk=16, stride=1024, nat=False),
}

class Counter:
    def __init__(self): self.n = 0; self.tag = {}
    def issue(self, tag=None):
        self.n += 1
        if tag is not None: self.tag[tag] = self.n
    def need(self, tag): return self.n - self.tag[tag]

class Ctx:
    def __init__(self):
        self.A = Asm(); self.vm = Counter(); self.lg = Counter(); self.sid = 0
    def emit(self, text, tag=None):
        for line in text.split('\n'):
            self.A(line)
            mn = line.strip().split()[0]
            if mn.startswith('buffer_'): self.vm.issue(tag)
            elif mn.startswith('ds_'): self.lg.issue(tag)

class UnitStream:
    def __init__(self, units, m0, after=()):
        self.units = units; self.m0 = m0; self.pos = 0; self.after = list(after)
    def remaining(self): return len(self.units) * 4 - self.pos
    def next(self):
        u, i = divmod(self.pos, 4); self.pos += 1
        U = self.units[u]
        d = f"buffer_load_dwordx4 v{vVO[U['g']] + i}, {srd(U['srd'])}, s{U['so']} offen offset:{i * 1024} lds"
        return ([self.m0(u)] if i == 0 else []), d, (U['lazy'] if i == 0 else []), ('u', id(self), u)
    def emit(self, C, count):
        assert count % 4 == 0 and self.pos % 4 == 0
        for _ in range(count // 4):
            L = [self.next() for _ in range(4)]
            C.emit(L[0][0][0] + "\ns_nop 0")
            for pre, d, post, tag in L: C.emit(d, tag)
            for p in L[0][2]: C.emit(p)

def front_units():
    out = []
    seq = [(n, s, h) for n in ('gu', 'q', 'd') for s in range(GEMM[n]['nk']) for h in range(2)]
    for k, (n, s, h) in enumerate(seq):
        G = GEMM[n]; step = 32 * G['stride']
        cur, nxt = sOFF[n] + s % 2, sOFF[n] + (s + 1) % 2
        lazy = []
        if h == 0 and n != 'gu': lazy = [f"s_add_u32 s{sTMP}, s{cur}, 128"]
        if h == 1 and s < G['nk'] - 1:
            lazy = [f"s_add_u32 s{nxt}, s{cur}, {step}", f"s_sub_u32 s{sWR}, s{nxt}, {step * G['nk']}", f"s_min_u32 s{nxt}, s{nxt}, s{sWR}"]
        out.append(dict(g=n, srd={'gu': (S_WG, S_WU)[h], 'q': S_WQ, 'd': S_WD}[n], so=sTMP if (h and n != 'gu') else cur, lazy=lazy))
    return out

def o_order():
    h0 = OPT['h0']
    return [(s, h) for s in range(h0) for h in range(2)] + [(s, 0) for s in range(h0, 16)] + [(s, 1) for s in range(h0, 16)]
def o_off(k):
    s, h = o_order()[k]
    return f"s_add_u32 s{sOFF['o'] + k % 2}, s{sOB + s % 4}, {(s // 4) * 32768 + h * 128}"
def o_units():
    return [dict(g='o', srd=S_WO, so=sOFF['o'] + k % 2, lazy=[o_off(k + 1)] if k < 31 else []) for k in range(32)]

class Fill:
    W = {'p': 1, 't': 2, 'w': 2, 'v': 2, 's': 0, 'G': 0}
    def __init__(self, lo=0, hi=0): self.q = []; self.lo = lo; self.hi = hi; self.done = 0; self.total = 0
    def add(self, kind, text, tag=None):
        for line in (text.split('\n') if kind != 'G' else [text]):
            self.q.append((kind, line, tag)); self.total += self.W[kind]
    def pick(self, n, room, mem_ok, here, window=40):
        while self.q and self.q[0][0] == 'G' and n >= self.q[0][1]: self.q.pop(0)
        rd, wr, best = set(), set(), None
        for j, (kind, text, tag) in enumerate(self.q[:window]):
            if kind == 'G': break
            I = Ins(text)
            free = not (I.rd & wr or I.wr & (rd | wr) or I.rd & here)
            if free and self.W[kind] <= room and (kind not in 'wv' or mem_ok):
                if self.W[kind] != 1: return j
                if best is None: best = j
            rd |= I.rd; wr |= I.wr
        return best

def run_gemm(C, groups, US, fills=(), bars=None, marks=None, bursts=None, after_tag=None):
    ng = len(groups); bars = bars or {}
    def utag(u): return ('u', id(US), u)
    def tr(n): return groups[n]['tr'](aF + 4 * (n % 4))
    g0 = groups[0]
    C.emit(f"s_waitcnt vmcnt({C.vm.need(utag(g0['u']))})")
    for tb in range(4): C.emit(g0['bread'](g0['b'], tb), ('b', g0['b']))
    for n in range(2):
        for x in tr(n): C.emit(x, ('a', n))
    C.emit(f"s_waitcnt lgkmcnt({C.lg.need(('a', 0))})")
    lazy = []
    for n, g in enumerate(groups):
        if marks and n in marks: stamp(C, marks[n])
        if after_tag and n in after_tag: assert C.vm.tag[after_tag[n]] <= C.vm.tag[utag(groups[n + 1]['u'])]
        gaps = [[], [], [], []]
        if n + 2 < ng: gaps[0] += [(x, ('a', n + 2)) for x in tr(n + 2)]
        item = None
        if US.remaining() > 0:
            if US.pos // 4 <= g['u'] + 5: item = US.next()
        elif US.after: item = US.after.pop(0)
        post = []
        if item:
            pre, d, post, tag = item
            gaps[1] = [(d, tag)]
            if pre:
                due = lazy + pre; lazy = []
                for x in due[:-1]: C.emit(x)
                gaps[0] = [(due[-1], None)] + gaps[0]
        if lazy and not (gaps[0] and gaps[0][0][0].startswith('s_')): gaps[0] = [(lazy.pop(0), None)] + gaps[0]
        lazy += post
        room = [0, OPT['room1'] if item else 2, 2 - len(g['breads']), 2]
        burst = bursts.get(n) if bursts else None
        if n in bars:
            assert not g['breads']
            gaps[2] = [("s_barrier", None)]; room[2] = 0
        elif item and US.remaining() > 0 and not g['breads'] and not burst and US.pos < (g['u'] + 5) * 4 + n % 4 + 1:
            pre, d, post, tag = US.next()
            gaps[2] = [(x, None) for x in (lazy + pre + ["s_nop 0"] if pre else [])] + [(d, tag)]
            lazy = (lazy if not pre else []) + post; room[2] = 0
        elif burst:
            assert not g['breads'] and not lazy and US.pos % 4 == 0
            for x, _ in burst:
                for F in fills: assert not any(Ins(x).rd & Ins(y).wr for k_, y, _t in F.q if k_ != 'G' and F.lo <= n), ("burst before its data", n, x)
            gaps[2] = list(burst); room[2] = 0
        else:
            if lazy: gaps[2].append((lazy.pop(0), None))
            for b in g['breads']: gaps[2].append((g['bread'](*b), ('b', b[0])))
        for F in fills:
            if not (F.lo <= n): continue
            quota = F.total * min(n + 1 - F.lo, F.hi - F.lo) / (F.hi - F.lo)
            for k in (1, 2, 3):
                here = set()
                while F.q and F.done < quota:
                    empty = not any(not x.startswith('s_') for x, _ in gaps[k])
                    j = F.pick(n, room[k], empty and k != 3, here)
                    if j is None: break
                    kind, text, tag = F.q.pop(j)
                    here |= Ins(text).wr
                    gaps[k].append((text, tag)); room[k] -= F.W[kind]; F.done += F.W[kind]
            if n + 1 == F.hi and F.q and n + 1 < ng:
                assert n + 1 not in bars and not (bursts and n + 1 in bursts), ("fillers late", n)
                F.hi += 1
        for tb in range(4):
            C.emit(mfma(g['acc'][tb], ar(aF + 4 * (n % 4)), ar(aB + 16 * g['bbuf'] + 4 * tb), "0" if g['first'] else g['acc'][tb]))
            late = []
            if tb == 3 and n + 1 < ng:
                tags = [('a', n + 1)]
                if groups[n + 1]['b'] != g['b']: tags.append(('b', groups[n + 1]['b']))
                w = f"lgkmcnt({min(C.lg.need(x) for x in tags)})"
                if n + 3 < ng and groups[n + 3]['u'] > max(x['u'] for x in groups[:n + 3]):
                    w = f"vmcnt({C.vm.need(utag(groups[n + 3]['u']))}) " + w
                C.emit("s_waitcnt " + w)
            if tb == 1 and n in bars and bars[n] is not None:
                C.emit(f"s_waitcnt lgkmcnt({C.lg.need(bars[n])})")
            for x, tag in gaps[tb]: C.emit(x, tag)
    for x in lazy: C.emit(x)

def front_groups(name, u0, accf, nxt):
    G = GEMM[name]; nk = G['nk']
    addr, uoff = (vANAT, 512) if G['nat'] else (vAACC, 2048)
    par = (u0 // 2) % 2
    def bread(bs, tb):
        return f"ds_read_b128 {ar(aB + 16 * bs[2] + 4 * tb)}, v{vLANE16} offset:{LDS_A + (bs[1] * 4 + tb) * 1024}"
    groups = []
    for s in range(nk):
        for nb in range(8):
            u = u0 + 2 * s + nb // 4
            def tr(b, u=u, nb=nb):
                o = (u % 6) * 4096
                return [f"ds_read_b64_tr_b16 {ar(b, 2)}, v{addr + nb % 4} offset:{o}", f"ds_read_b64_tr_b16 {ar(b + 2, 2)}, v{addr + nb % 4} offset:{o + uoff}"]
            nb_key = (name, s + 1, (par + s + 1) % 2) if s + 1 < nk else ((nxt, 0, (par + s + 1) % 2) if nxt else None)
            groups.append(dict(u=u, b=(name, s, (par + s) % 2), bbuf=(par + s) % 2, acc=[accf(nb, tb) for tb in range(4)], first=s == 0,
                               breads=[(nb_key, nb - 1)] if (1 <= nb <= 4 and nb_key) else [], tr=tr, bread=bread))
    return groups

def o_groups():
    def bread(bs, tb): return f"ds_read_b128 {ar(aB2 + 16 * bs[2] + 4 * tb)}, v{vOB} offset:{(bs[1] * 4 + tb) * 1024}"
    order = o_order(); h0 = OPT['h0']
    unit = {sh: k for k, sh in enumerate(order)}
    runs = [(s, [(h, b) for h in range(2) for b in range(4)]) for s in range(h0)] + [(s, [(0, b) for b in range(4)]) for s in range(h0, 16)]
    if OPT['quart']:
        runs += [(s, [(1, b) for b in range(4)]) for s in range(h0, 12)]
        runs += [(s, [(1, 0), (1, 1)]) for s in range(12, 16)] + [(s, [(1, 2), (1, 3)]) for s in range(12, 16)]
    else: runs += [(s, [(1, b) for b in range(4)]) for s in range(h0, 16)]
    groups = []
    for k, (s, blocks) in enumerate(runs):
        nxt = (k + 1, runs[k + 1][0], (k + 1) % 2) if k + 1 < len(runs) else None
        for idx, (h, b4) in enumerate(blocks):
            uu = unit[(s, h)]
            def tr(b, uu=uu, b4=b4):
                q = uu % 6
                addr, o = (vAACC, q * 4096) if q < 4 else (vANAT, (5 - q) * 16384)
                return [f"ds_read_b64_tr_b16 {ar(b, 2)}, v{addr + b4} offset:{o}", f"ds_read_b64_tr_b16 {ar(b + 2, 2)}, v{addr + b4} offset:{o + 2048}"]
            js = {8: [idx - 1] if 1 <= idx <= 4 else [], 4: [idx], 2: [2 * idx, 2 * idx + 1]}[len(blocks)]
            groups.append(dict(u=uu, b=(k, s, k % 2), bbuf=k % 2 + (aB2 - aB) // 16, acc=[xacc(4 * h + b4, tb) for tb in range(4)], first=s == 0,
                               breads=[(nxt, j) for j in js] if nxt else [], tr=tr, bread=bread))
    return groups

def xacc(nb, tb): return vr(vX + (nb * 4 + tb) * 4)

def pack_store(F, a, sST):
    for tb in range(4):
        lo = vX + ((2 * a) * 4 + tb) * 4; hi = lo + 16
        F.add('p', f"v_cvt_pk_bf16_f32 v{lo}, v{lo}, v{lo+1}\nv_cvt_pk_bf16_f32 v{lo+1}, v{lo+2}, v{lo+3}\n"
                   f"v_cvt_pk_bf16_f32 v{lo+2}, v{hi}, v{hi+1}\nv_cvt_pk_bf16_f32 v{lo+3}, v{hi+2}, v{hi+3}")
        F.add('v', f"buffer_store_dwordx4 {vr(lo)}, v{vLANE16}, {srd(S_WS)}, s{sST} offen offset:{tb * 1024}" + (" sc1" if OPT['fused'] else ""))

def flush(C, F):
    for kind, text, tag in F.q: C.emit(text, tag)
    F.q = []

def kread(buf, j, off): return [f"ds_read_b128 {buf}, v{vKA + j} offset:{off}"]
def vread(b, db, off):
    return [f"ds_read_b64_tr_b16 {ar(b, 2)}, v{vVA + db} offset:{off}", f"ds_read_b64_tr_b16 {ar(b + 2, 2)}, v{vVA + db} offset:{off + 4096}"]
def kdma(i): return f"buffer_load_dwordx4 v{vKD + i}, {srd(S_K)}, s{sKOFF} offen offset:{i * 1024} lds"
def vdma(i): return f"buffer_load_dwordx4 v{vVD + i % 2}, {srd(S_V)}, s{sVOFF} offen offset:{i * 1024} lds"
def adv(s): return [f"s_add_u32 s{s}, s{s}, 16384", f"s_and_b32 s{s}, s{s}, 0x7ffff"]
def tile_dma(which, slot):
    if which == 'k': return [([f"s_add_u32 m0, s{sKM0}, {slot * 16384}"] if i == 0 else [], kdma(i), adv(sKOFF) if i == 3 else [], None) for i in range(4)]
    return [([f"s_add_u32 m0, s{sVM0}, {slot * 16384}"] if i == 0 else [], vdma(i), adv(sVOFF) if i == 3 else [], None) for i in range(4)]

def group_reads(n, koff, voff):
    b = aF + 4 * (n % 4)
    if n < 8: return kread(ar(b), n % 4, koff + (n // 4) * 4096)
    return vread(b, n - 8, voff)
def qk_mfma(n, qb, S, A=None, zero=False):
    kb, j = n // 4, n % 4
    d = vr(S + (kb * 4 + qb) * 4)
    return mfma(d, A or ar(aF + 4 * (n % 4)), vr(vQ + (qb * 4 + j) * 4), d if j else ("0" if zero else vr(vNM + 4 * qb)))
def preg(par, qb): return vP + 8 * qb + 4 * par
def pv_mfma(n, qb, par, zero=False):
    d = ar(aO + ((n - 8) * 4 + qb) * 4)
    return mfma(d, ar(aF + 4 * (n % 4)), vr(preg(par, qb)), "0" if zero else d)
def sum_mfma(qb):
    return f"v_smfmac_f32_16x16x64_bf16 {ar(aL + 4 * qb)}, {ar(aONE)}, {vr(vP + 8 * qb, 8)}, v{vIDX}"

def step(C, par, koff, voff, look, dmas, sync=None, tail=(), qk=True, pv=True, zero=False, extra=None, g5=(), carry=()):
    Sc, Sn = vS[par], vS[1 - par]
    extra = extra or {}
    sid = C.sid; C.sid += 1
    def ex(e):
        x = Sc + (((e // 4) % 2) * 4 + e // 8) * 4 + e % 4
        return f"v_exp_f32 v{x}, v{x}"
    def cv(k):
        x = Sc + (((k // 2) % 2) * 4 + k // 4) * 4 + 2 * (k % 2)
        return f"v_cvt_pk_bf16_f32 v{preg(par, k // 4) + k % 4}, v{x}, v{x + 1}"
    ns = [n for n in range(16) if (qk if n < 8 else pv)]
    N = len(ns); per = 32 // N
    dmas = list(dmas); scal = []
    def put(items):
        for x in items:
            tag = None
            if isinstance(x, tuple): x, tag = x
            if x == 'WAIT':
                x = f"s_waitcnt lgkmcnt({C.lg.need(tag)})"; tag = None
            elif x == 'SYNC': x = f"s_waitcnt vmcnt({sync() if callable(sync) else sync}) lgkmcnt(0)"
            C.emit(x, tag)
    lk = [[(x, (sid + 1, j)) for x in look[j]] for j in range(2)]
    e = 0; c = 0
    for idx, n in enumerate(ns):
        if idx + 2 < N: rd = [(x, (sid, idx + 2)) for x in group_reads(ns[idx + 2], koff, voff)]
        else: rd = lk[idx + 2 - N] if par == 0 else []
        cs = list(carry) if idx == 0 else []
        while c < e // 2: cs.append(cv(c)); c += 1
        es = [ex(e + k) for k in range(per)]; e += per
        w = [('WAIT', (sid, idx + 1) if idx + 1 < N else (sid + 1, 0))]
        if par == 1 and idx == N - 2 and sync is not None: w = ['SYNC']
        xs = list(extra.get(n, [])) + (list(g5) if n == 5 else [])
        if par == 1 and idx == N - 1:
            one = len(lk[0]) == 1
            bar = ["s_barrier"] if sync is not None else []
            if per == 4: g = [bar, lk[0] + [es[0]], [es[1]] + cs, [es[2], es[3]] + xs]
            else:
                g = [bar, lk[0] + (cs if one else []), [es[0]], [es[1]] + xs]
                if not one: c -= len(cs)
        elif per == 4:
            g = [rd + cs[:1], [es[0]] + cs[1:], [es[1]] + xs, w + [es[2], es[3]]]
        elif dmas:
            pre, d, post, tag = dmas.pop(0)
            one = len(rd) < 2
            g = [scal + pre + rd + (cs if one else []), [(d, tag)] + ([] if one else cs), [es[0]] + xs, w + [es[1]]]; scal = list(post)
        elif len(rd) == 2:
            g = [rd, scal[:1] + [es[0]], cs + xs, w + [es[1]]]; scal = scal[1:]
        else:
            g = [rd + cs, scal[:1] + [es[0]], xs, w + [es[1]]]; scal = scal[1:]
        for qb in range(4):
            C.emit(qk_mfma(n, qb, Sn) if n < 8 else pv_mfma(n, qb, 1 - par, zero))
            put(g[qb])
    assert not dmas and not scal
    cs = [cv(k) for k in range(c, 16)]
    if par == 0: return cs
    one = len(lk[1]) == 1
    g = [lk[1] + (cs[:1] if one else []), cs[1:] if one else [], [], [('WAIT', (sid + 1, 0))]]
    if not one: g[0] = cs; g[1] = lk[1]
    if tail: g[1] = [tail[0]] + g[1]; g[2] = [tail[1]]; g[3] = g[3] + [tail[2]]
    for qb in range(4):
        C.emit(sum_mfma(qb)); put(g[qb])
    return []

def iteration(C, k, tail=(), hook=()):
    slot = (k + 1) % 3
    ks, nx, ds = slot * 16384, ((slot + 1) % 3) * 16384, (slot + 2) % 3
    per = OPT['per']
    rsteps, ssteps = ((0, 1, 2, 3), (1, 2, 3, 4)) if per == 4 else ((0, 2), (1, 3))
    def st(j): return [([], f"buffer_store_dwordx4 {vr(vE)}, v{vLANE16}, {srd(S_DS)}, s{sDOFF} offen offset:{ssteps.index(j) * 1024}" + (" sc1" if OPT['fused'] else ""),
                        [f"s_add_u32 s{sDOFF}, s{sDOFF}, {1024 * per}"] if j == ssteps[-1] else [], None)] if j in ssteps else []
    def rd(j): return [f"ds_read_b128 {vr(vE)}, v{vDA} offset:{rsteps.index(j) * 1024}"] if j in rsteps else ([f"v_add_u32 v{vDA}, {4096 * per}, v{vDA}"] if j == 4 else (list(hook) if j == 5 else []))
    cy = step(C, 0, ks, ks, [group_reads(0, ks + 8192, 0), group_reads(1, ks + 8192, 0)], tile_dma('k', ds) + st(2 * k), g5=rd(2 * k))
    step(C, 1, ks + 8192, ks + 8192, [group_reads(0, nx, 0), group_reads(1, nx, 0)], tile_dma('v', ds) + st(2 * k + 1),
         sync=((9, 11, 10) if per == 4 else (9, 10, 9))[k], tail=tail, g5=rd(2 * k + 1), carry=cy)

def stage(k): return LDS_A + (k // OPT['per']) * 4096 * OPT['per'] + (k % OPT['per']) * 1024

def xlane(C, op, m, t):
    C.emit(f"v_mov_b32 v{t}, v{m}\nv_permlane32_swap_b32 v{m}, v{t}\n{op} v{m}, v{m}, v{t}")
    C.emit(f"v_mov_b32 v{t}, v{m}\nv_permlane16_swap_b32 v{m}, v{t}\n{op} v{m}, v{m}, v{t}")

def stamp(C, k):
    if OPT['stamps'] and k in (11, 12, 13): C.A(f"s_memrealtime s[100:101]\ns_waitcnt lgkmcnt(0)\nv_writelane_b32 v55, s100, {k + 8}")
    if OPT['stamps']: C.A(f"s_memtime s[100:101]\ns_waitcnt lgkmcnt(0)\nv_writelane_b32 v55, s100, {k}")

def att_offsets(C):
    E = C.emit
    E(f"s_and_b32 s{sT2}, s{sRB}, {OPT['kvst']}\ns_lshl_b32 s{sT2}, s{sT2}, {14 + OPT.get('kvsh', 0)}\ns_and_b32 s{sT3}, s{sW}, 1\ns_lshl_b32 s{sT3}, s{sT3}, 12\ns_add_u32 s{sKV0}, s{sT2}, s{sT3}")
    E(f"s_lshr_b32 s{sT1}, s{sW}, 1\ns_add_u32 s{sT1}, s{sT1}, 1\ns_lshl_b32 s{sT1}, s{sT1}, 13\ns_add_u32 s{sKOFF}, s{sKV0}, s{sT1}")
    E(f"s_and_b32 s{sKOFF}, s{sKOFF}, 0x7ffff\ns_mov_b32 s{sVOFF}, s{sKOFF}")

def first_pieces():
    L = [([f"s_mov_b32 m0, s{sKVM}"] if i == 0 else [], f"buffer_load_dwordx4 v{vD0 + i}, {srd(S_KV)}, s{sKV0} offen offset:{i * 1024} lds", [], 'kv0') for i in range(4)]
    L += [([f"s_sub_u32 m0, s{sKM0}, {LDS_K - LDS_K1}"] if i == 0 else [], kdma(i), adv(sKOFF) if i == 3 else [], 'kv0') for i in range(4)]
    return L

def emit_dmas(C, L, nop=True):
    for pre, d, post, tag in L:
        for x in pre: C.emit(x)
        if pre and nop: C.emit("s_nop 0")
        C.emit(d, tag)
        for x in post: C.emit(x)

vG = 64

def silu(add, d, tmp):
    for e in range(8): add('p', f"v_mul_f32 v{tmp + e}, {f32(-LOG2E)}, v{d + e}")
    for e in range(8): add('t', f"v_exp_f32 v{tmp + e}, v{tmp + e}")
    for e in range(8): add('p', f"v_add_f32 v{tmp + e}, 1.0, v{tmp + e}")
    for e in range(8): add('t', f"v_rcp_f32 v{tmp + e}, v{tmp + e}")
    for e in range(8): add('p', f"v_mul_f32 v{d + e}, v{d + e}, v{tmp + e}")

def slice_srd(C, SP, sj):
    C.emit(f"s_lshl_b32 s{sT1}, s{sRB}, 2\ns_add_u32 s{sT1}, s{sT1}, s{sW}\ns_lshl_b32 s{sT1}, s{sT1}, 3\ns_add_u32 s{sT1}, s{sT1}, s{sj}\ns_lshl_b32 s{sT1}, s{sT1}, 11")
    C.emit(f"s_add_u32 s{SP}, s86, s{sT1}\ns_addc_u32 s{SP + 1}, s87, 0\ns_sub_u32 s{SP + 2}, {32 << 20}, s{sT1}\ns_mov_b32 s{SP + 3}, 0x20000")

SF, SO, SP = 76, 80, S_V
vTOK, vPA, vPL, vXA, vOWN, vXD, vU, vSs, vD = 2, 59, 21, 57, 104, 112, 96, 128, 192
POLL = f"buffer_load_dword v{vPL}, v{vPA}, {srd(SF)}, 0 offen sc1"

def tail_setup():
    return (f"s_lshl_b32 s{sT1}, s{sRB}, 10\ns_add_u32 s{sT1}, s{sT1}, {32 << 20}\ns_add_u32 s{SF}, s86, s{sT1}\ns_addc_u32 s{SF + 1}, s87, 0\ns_mov_b32 s{SF + 2}, 1024\ns_mov_b32 s{SF + 3}, 0x20000\n"
            f"s_lshl_b32 s{sT1}, s{sRB}, 16\ns_add_u32 s{SO}, s82, s{sT1}\ns_addc_u32 s{SO + 1}, s83, 0\ns_mov_b32 s{SO + 2}, 65536\ns_mov_b32 s{SO + 3}, 0x20000\n"
            f"s_lshl_b32 s{sT2}, s{sW}, 8\nv_and_b32 v{vPA}, 15, v0\nv_lshl_add_u32 v{vPA}, v{vPA}, 2, s{sT2}\n" + x_addr(sG))

def x_addr(sj):
    return (f"s_and_b32 s{sT1}, s{sj}, 1\ns_lshl_b32 s{sT1}, s{sT1}, 15\ns_lshr_b32 s{sT2}, s{sj}, 1\ns_lshl_b32 s{sT2}, s{sT2}, 6\ns_add_u32 s{sT1}, s{sT1}, s{sT2}\ns_lshl_b32 s{sT2}, s{sW}, 8\ns_add_u32 s{sT1}, s{sT1}, s{sT2}\n"
            f"v_and_b32 v{vXA}, 15, v0\nv_lshrrev_b32 v{vT[7]}, 4, v0\nv_lshlrev_b32 v{vXA}, 10, v{vXA}\nv_lshl_add_u32 v{vXA}, v{vT[7]}, 3, v{vXA}\nv_add_u32 v{vXA}, s{sT1}, v{vXA}")

def x_loads(): return [f"buffer_load_dwordx2 {vr(vXD + 4 * f + 2 * h, 2)}, v{vXA}, {srd(S_X)}, {'s%d' % s16K if f else 0} offen offset:{32 * h}" for f in range(2) for h in range(2)]

def tail(C):
    E = C.emit; A = C.A; t = vT
    look = f"v_cmp_eq_u32 vcc, s{sTOK}, v{vPL}\ns_and_b32 s{sRAW}, vcc_lo, 0xff\ns_lshr_b32 s{sAB}, vcc_lo, 8\ns_and_b32 s{sAB}, s{sAB}, 0xff"
    for j in range(8):
        E(f"s_cmp_eq_u32 s{sG}, {j}\ns_cbranch_scc0 L_own{j}")
        for i in range(8): E(f"v_mov_b32 v{vOWN + i}, v{vX + (j // 2) * 32 + (j % 2) * 8 + i}")
        A(f"L_own{j}:")
    E(f"v_readfirstlane_b32 s{sTOK}, v{vTOK}\ns_mov_b32 s{sCNT}, 0\ns_mov_b32 s{sGONE}, 0\ns_mov_b32 s{sJ}, s{sG}\ns_lshl_b32 s{sREADY}, 1, s{sG}\ns_mov_b32 s{sTODO}, -1")
    E(f"s_cmp_lg_u32 s{sTOK}, 0\ns_cbranch_scc1 L_havetok")
    E(f"v_mov_b32 v{t[4]}, s{sCAND}\nv_mov_b32 v{t[5]}, 0\nglobal_atomic_cmpswap v{t[6]}, v{t[5]}, v[{t[4]}:{t[5]}], s[84:85] sc0 sc1\ns_waitcnt vmcnt(0)")
    E(f"v_readfirstlane_b32 s{sTOK}, v{t[6]}\ns_nop 0\ns_cmp_eq_u32 s{sTOK}, 0\ns_cselect_b32 s{sTOK}, s{sCAND}, s{sTOK}")
    A("L_havetok:")
    if OPT['dropflag'] >= 0: E(f"s_cmp_eq_u32 s{sG}, {OPT['dropflag']}\ns_cbranch_scc0 L_sendflag\ns_mov_b32 s{sT1}, 0\nL_late:\ns_sleep 127\ns_add_u32 s{sT1}, s{sT1}, 1\ns_cmp_lt_u32 s{sT1}, 200\ns_cbranch_scc1 L_late\nL_sendflag:")
    E(f"s_waitcnt vmcnt({C.vm.need('poll0')})\n" + look + f"\ns_andn2_b32 s{sT3}, s{sRAW}, s{sREADY}\ns_or_b32 s{sREADY}, s{sREADY}, s{sRAW}\ns_mov_b32 s{sLOADED}, s{sREADY}\ns_brev_b32 s{sT2}, 1")
    for i in range(4): E(f"s_mov_b32 s{SP + i}, s{S_DP + i}" if i < 2 else (f"s_mov_b32 s{SP + 2}, s{sDPN}" if i == 2 else f"s_mov_b32 s{SP + 3}, 0x20000"))
    for k in range(8): E(f"s_bitcmp1_b32 s{sT3}, {k}\ns_cselect_b32 s{66 + k if k else sT1}, {(16 << 20) + (k << 21)}, s{sT2}")
    for k in range(8):
        for f in range(2): E(f"buffer_load_dwordx4 {vr(vSs + (f * 8 + k) * 4)}, v{vLANE16}, {srd(SP)}, s{66 + k if k else sT1} offen offset:{f * 1024} sc1")
    E("s_waitcnt vmcnt(16)\ns_barrier")
    stamp(C, 12)
    E(f"s_cmp_eq_u32 s{sW}, 0\ns_cbranch_scc0 L_sent")
    E(f"s_lshl_b32 s{sT1}, s{sG}, 2\nv_lshlrev_b32 v{t[5]}, 8, v0\nv_mov_b32 v{t[6]}, s{sTOK}\nbuffer_store_dword v{t[6]}, v{t[5]}, {srd(SF)}, s{sT1} offen sc1")
    A("L_sent:")
    E(f"s_mov_b32 s{sT3}, 1\ns_cmp_lg_u32 s{sEARLY}, 0\ns_cbranch_scc1 L_issued")
    A("L_slice:")
    slice_srd(C, SP, sJ)
    E(x_addr(sJ))
    for x in x_loads(): E(x)
    for i in range(8): E(f"v_mov_b32 v{vOWN + i}, 0")
    E(f"s_mov_b32 s{sLOADED}, 0")
    A("L_look:")
    E(look + f"\ns_or_b32 s{sREADY}, s{sREADY}, s{sRAW}\ns_andn2_b32 s{sT3}, s{sREADY}, s{sLOADED}\ns_mov_b32 s{sLOADED}, s{sREADY}")
    for k in range(8):
        E(f"s_bitcmp1_b32 s{sT3}, {k}\ns_cbranch_scc0 L_skip{k}\ns_mov_b32 s{sT1}, {k << 21}\ns_mov_b32 s{sT2}, {(16 << 20) + (k << 21)}")
        for base, so in ((vSs, sT2), (vD, sT1)):
            if base == vD: E(f"s_cmp_lg_u32 s{sEARLY}, 0\ns_cbranch_scc1 L_skip{k}")
            for f in range(2): E(f"buffer_load_dwordx4 {vr(base + (f * 8 + k) * 4)}, v{vLANE16}, {srd(SP)}, s{so} offen offset:{f * 1024} sc1")
        A(f"L_skip{k}:")
    A("L_issued:")
    E(f"s_cmp_eq_u32 s{sLOADED}, 0xff\ns_cbranch_scc1 L_sum")
    E(f"s_cmp_lg_u32 s{sT3}, 0\ns_cbranch_scc1 L_poll\ns_bitcmp1_b32 s{sRAW}, s{sG}\ns_cbranch_scc0 L_poll\ns_cmp_lg_u32 s{sGONE}, 0\ns_cbranch_scc1 L_fin")
    E(f"s_sleep {OPT['sleep']}\ns_add_u32 s{sCNT}, s{sCNT}, 1\ns_cmp_lt_u32 s{sCNT}, {OPT['limit']}\ns_cbranch_scc1 L_poll")
    E(f"s_lshl_b32 s{sT1}, s{sW}, 8\ns_lshl_b32 s{sT2}, s{sG}, 2\ns_add_u32 s{sT1}, s{sT1}, s{sT2}\ns_add_u32 s{sT1}, s{sT1}, 32\nv_lshlrev_b32 v{t[6]}, 10, v0\nv_mov_b32 v{t[7]}, s{sTOK}")
    E(f"buffer_store_dword v{t[7]}, v{t[6]}, {srd(SF)}, s{sT1} offen sc1\ns_mov_b32 s{sGONE}, 1\ns_waitcnt vmcnt(0)")
    A("L_poll:")
    E(POLL + "\ns_waitcnt vmcnt(0)\ns_branch L_look")
    A("L_sum:")
    E("s_waitcnt vmcnt(0)")
    stamp(C, 13)
    def total(srcs, d):
        for k, src in enumerate(srcs):
            for r in range(4):
                a = d + 2 * r if k == 0 else vU + 2 * r
                E(f"v_lshlrev_b32 v{a}, 16, v{src + r}\nv_and_b32 v{a + 1}, 0xffff0000, v{src + r}")
            for r in (range(4) if k else ()): E(f"v_pk_add_f32 v[{d + 2 * r}:{d + 2 * r + 1}], v[{d + 2 * r}:{d + 2 * r + 1}], v[{vU + 2 * r}:{vU + 2 * r + 1}]")
    E(f"s_cmp_lg_u32 s{sEARLY}, 0\ns_cbranch_scc1 L_gated")
    for f in range(2):
        total([vD + 32 * f + 4 * k for k in range(8)], vG + 8 * f); silu(lambda k, x: E(x), vG + 8 * f, vU)
    A("L_gated:")
    for f in range(2):
        d, sm = vG + 8 * f, vG + 16 + 8 * f
        total([vOWN + 4 * f] + [vSs + 32 * f + 4 * k for k in range(8)], sm)
        for r in range(4):
            x = vXD + 4 * f + r; u = vU + 2 * r
            E(f"v_lshlrev_b32 v{u}, 16, v{x}\nv_and_b32 v{u + 1}, 0xffff0000, v{x}")
            E(f"v_pk_fma_f32 v[{u}:{u + 1}], v[{sm + 2 * r}:{sm + 2 * r + 1}], v[{d + 2 * r}:{d + 2 * r + 1}], v[{u}:{u + 1}]\nv_cvt_pk_bf16_f32 v{x}, v{u}, v{u + 1}")
        for h in range(2): E(f"buffer_store_dwordx2 {vr(vXD + 4 * f + 2 * h, 2)}, v{vXA}, {srd(SO)}, {'s%d' % s16K if f else 0} offen offset:{32 * h}")
    A("L_seen:")
    E(f"s_cmp_eq_u32 s{sRAW}, 0xff\ns_cbranch_scc1 L_all\n" + POLL + "\ns_waitcnt vmcnt(0)\n" + look + "\ns_branch L_seen")
    A("L_all:")
    E(f"s_lshl_b32 s{sT1}, 1, s{sJ}\ns_andn2_b32 s{sTODO}, s{sTODO}, s{sT1}\ns_and_b32 s{sT1}, s{sTODO}, s{sAB}\ns_cbranch_scc0 L_fin")
    E(f"s_ff1_i32_b32 s{sJ}, s{sT1}\ns_mov_b32 s{sEARLY}, 0\ns_waitcnt vmcnt(0)\ns_branch L_slice")
    A("L_fin:")

def main_kernel():
    C = Ctx(); E = C.emit; A = C.A
    t = vT
    A(f"{NAME}_kernel:" if OPT['fused'] else "main_kernel:")
    E("s_cmp_ge_u32 s2, 256\ns_cbranch_scc1 L_end")
    if OPT['stamps'] or OPT['dbg']: E("s_memrealtime s[96:97]\ns_memtime s[98:99]")
    E("s_load_dwordx16 s[64:79], s[0:1], 0\ns_load_dwordx4 s[80:83], s[0:1], 64\ns_load_dwordx4 s[84:87], s[0:1], 80\ns_memrealtime s[60:61]")
    E(f"v_lshrrev_b32 v{t[0]}, 6, v0\nv_and_b32 v0, 63, v0\nv_readfirstlane_b32 s{sW}, v{t[0]}")
    E(f"s_and_b32 s{sG}, s2, 7\ns_lshr_b32 s{sRB}, s2, 3\ns_and_b32 s{sROT}, s{sRB}, 15\ns_and_b32 s{sODD}, s2, 1")
    E(f"v_and_b32 v{t[0]}, 15, v0\nv_lshrrev_b32 v{t[1]}, 4, v0\ns_lshl_b32 s{sT2}, s{sW}, 14")
    E(f"v_lshlrev_b32 v{t[2]}, 10, v{t[0]}\nv_lshl_add_u32 v{t[2]}, v{t[1]}, 4, v{t[2]}\nv_add_u32 v{t[2]}, s{sT2}, v{t[2]}")
    E(f"s_lshl_b32 s8, s{sROT}, 6\ns_lshl_b32 s{sT1}, s{sRB}, 16\nv_lshlrev_b32 v{vLANE16}, 4, v0")
    for jj in range(1, 16): E(f"s_add_u32 s{8 + jj}, s{7 + jj}, 64\ns_and_b32 s{8 + jj}, s{8 + jj}, 1023")
    E("s_waitcnt lgkmcnt(0)")
    def mk(sr, p, size):
        E(f"s_add_u32 s{sr}, s{p}, s{sT1}\ns_addc_u32 s{sr+1}, s{p+1}, 0\ns_sub_u32 s{sr+2}, {size}, s{sT1}\ns_mov_b32 s{sr+3}, 0x20000")
    mk(S_X, 64, 2048 * 1024)
    for jj in range(16):
        E(f"buffer_load_dwordx4 {vr(vX + 4 * jj)}, v{t[2]}, {srd(S_X)}, s{8 + jj} offen", ('x', jj))
    E(f"s_mul_i32 s{sT1}, s{sRB}, 37\ns_lshr_b32 s{sT1}, s{sT1}, 8\ns_mul_i32 s{sT1}, s{sT1}, 7\ns_sub_u32 s{sROT7}, s{sRB}, s{sT1}")
    E(f"s_mul_i32 s{sT1}, s{sG}, 448\ns_lshl_b32 s{sT2}, s{sW}, 7\ns_add_u32 s{sT1}, s{sT1}, s{sT2}\ns_lshl_b32 s{sT2}, s{sODD}, 6\ns_sub_u32 s{sT1}, s{sT1}, s{sT2}")
    mk(S_WG, 76, 512 * 3584); mk(S_WU, 78, 512 * 3584)
    E(f"s_lshl_b32 s{sT1}, s{sG}, 10\ns_lshl_b32 s{sT3}, s{sW}, 8\ns_add_u32 s{sT1}, s{sT1}, s{sT3}"); mk(S_WQ, 70, 512 * 8192)
    E(f"s_lshl_b32 s{sT1}, s{sG}, 19\ns_add_u32 s{sT1}, s{sT1}, s{sT3}"); mk(S_WO, 72, 4096 * 1024)
    E(f"s_mul_i32 s{sT1}, s{sG}, {224 * 1024}\ns_add_u32 s{sT1}, s{sT1}, s{sT3}"); mk(S_WD, 80, 1792 * 1024)
    E(f"s_lshl_b32 s{sT1}, s{sG}, 19"); mk(S_K, 66, 8 * 524288); mk(S_V, 68, 8 * 524288)
    E(f"s_mov_b32 s{S_K+2}, 524288\ns_mov_b32 s{S_V+2}, 524288")
    E(f"s_lshl_b32 s{sT1}, s{sG}, 5\ns_add_u32 s{sT1}, s{sT1}, s{sRB}\ns_lshl_b32 s{sT1}, s{sT1}, 2\ns_add_u32 s{sT1}, s{sT1}, s{sW}\ns_lshl_b32 s{sT1}, s{sT1}, 14")
    mk(S_WS, 86, 32 << 20)
    E(f"s_or_b32 s{sCAND}, s60, 1")
    E(f"s_mul_i32 s{sRING}, s{sW}, {RING}\ns_add_u32 s{sRING}, s{sRING}, {LDS_R}")
    for n in ('gu', 'q', 'd'):
        E(f"s_mul_i32 s{sOFF[n]}, s{sROT7 if n == 'd' else sROT}, {32 * GEMM[n]['stride']}")
    for k in range(4): E(f"s_add_u32 s{sOB + k}, s{sROT}, {k}\ns_and_b32 s{sOB + k}, s{sOB + k}, 3\ns_lshl_b32 s{sOB + k}, s{sOB + k}, 17")
    E(f"v_lshrrev_b32 v{t[3]}, 3, v0\nv_and_b32 v{t[4]}, 7, v0")
    E(f"v_and_b32 v{t[5]}, 1, v{t[1]}\nv_lshlrev_b32 v{t[5]}, 1, v{t[5]}\nv_xor_b32 v{t[5]}, v{t[5]}, v{t[4]}")
    E(f"v_lshlrev_b32 v{t[6]}, 1, v{t[1]}\nv_xor_b32 v{t[6]}, v{t[6]}, v{t[4]}")
    E(f"s_mul_i32 s{sT1}, s{sODD}, 3\ns_add_u32 s{sT1}, s{sT1}, s{sW}\ns_cmp_eq_u32 s{sT1}, 3\ns_cselect_b32 s{sT2}, 4, 0\ns_lshl_b32 s{sT3}, s{sODD}, 2")
    for n in ('gu', 'q', 'd'):
        st = GEMM[n]['stride']
        E(f"s_mov_b32 s{sT1}, {st}\nv_mul_lo_u32 v{t[7]}, s{sT1}, v{t[3]}")
        for i in range(4):
            d = vVO[n] + i
            if GEMM[n]['nat']: E(f"v_xor_b32 v{d}, {4 * (i % 2)}, v{t[5]}")
            else: E(f"v_mov_b32 v{d}, v{t[6]}")
            if n == 'gu': E(f"v_xor_b32 v{t[2]}, s{sT3}, v{d}\nv_and_b32 v{t[2]}, s{sT2}, v{t[2]}\nv_lshlrev_b32 v{t[2]}, 28, v{t[2]}")
            E(f"v_lshl_add_u32 v{d}, v{d}, 4, v{t[7]}\nv_add_u32 v{d}, {i * (8 * st - 1024)}, v{d}")
            if n == 'gu': E(f"v_add_u32 v{d}, v{d}, v{t[2]}")
    US = UnitStream(front_units(), lambda u: f"s_add_u32 m0, s{sRING}, {(u % 6) * 4096}")
    E(f"v_bfe_u32 v{t[2]}, v0, 2, 2\nv_and_b32 v{t[3]}, 3, v0")
    E(f"v_lshrrev_b32 v{t[4]}, 1, v{t[2]}\nv_and_b32 v{t[5]}, 1, v{t[1]}\nv_lshl_add_u32 v{t[4]}, v{t[5]}, 1, v{t[4]}")
    E(f"v_lshlrev_b32 v{t[4]}, 5, v{t[4]}\nv_lshl_add_u32 v{t[4]}, v{t[3]}, 3, v{t[4]}\nv_lshl_add_u32 v{t[4]}, v{t[2]}, 7, v{t[4]}\nv_add_u32 v{t[4]}, s{sRING}, v{t[4]}")
    E(f"v_lshl_add_u32 v{vANAT}, v{t[1]}, 10, v{t[4]}\nv_lshl_add_u32 v{vAACC}, v{t[1]}, 9, v{t[4]}")
    for b in range(1, 4):
        E(f"v_xor_b32 v{vANAT + b}, {b << 5}, v{vANAT}\nv_xor_b32 v{vAACC + b}, {b << 5}, v{vAACC}")
    E(f"v_lshrrev_b32 v{t[4]}, 1, v{t[1]}\nv_lshl_add_u32 v{t[4]}, v{t[5]}, 1, v{t[4]}")
    E(f"v_xor_b32 v{t[4]}, v{t[4]}, v{t[0]}\nv_lshlrev_b32 v{t[4]}, 4, v{t[4]}\nv_lshl_add_u32 v{t[4]}, v{t[0]}, 8, v{t[4]}\nv_add_u32 v{vKA}, {LDS_K0}, v{t[4]}")
    for j in range(1, 4): E(f"v_xor_b32 v{vKA + j}, {j << 6}, v{vKA}")
    E(f"v_lshl_add_u32 v{t[4]}, v{t[5]}, 2, v{t[2]}\nv_lshlrev_b32 v{t[4]}, 5, v{t[4]}\nv_lshl_add_u32 v{t[4]}, v{t[3]}, 3, v{t[4]}")
    E(f"v_lshl_add_u32 v{t[6]}, v{t[1]}, 2, v{t[2]}\nv_lshl_add_u32 v{t[4]}, v{t[6]}, 8, v{t[4]}\nv_add_u32 v{vVA}, {LDS_V0}, v{t[4]}")
    for db in range(1, 8): E(f"v_xor_b32 v{vVA + db}, {db << 5}, v{vVA}")
    for i in range(4):
        E(f"v_xor_b32 v{t[4]}, v{t[0]}, v{t[1]}\nv_xor_b32 v{t[4]}, {4 * i}, v{t[4]}\nv_lshlrev_b32 v{t[4]}, 4, v{t[4]}\nv_lshl_add_u32 v{vKD + i}, v{t[1]}, 8, v{t[4]}")
    for i in range(2):
        E(f"v_lshlrev_b32 v{t[4]}, 1, v{t[1]}\nv_xor_b32 v{t[4]}, v{t[4]}, v{t[0]}\nv_xor_b32 v{t[4]}, {8 * i}, v{t[4]}\nv_lshlrev_b32 v{t[4]}, 4, v{t[4]}\nv_lshl_add_u32 v{vVD + i}, v{t[1]}, 8, v{t[4]}")
    E(f"s_lshl_b32 s{sT1}, s{sW}, 12\ns_add_u32 s{sKM0}, s{sT1}, {LDS_K}\ns_add_u32 s{sVM0}, s{sT1}, {LDS_V}")
    E(f"s_cmp_lt_u32 s{sW}, 2\ns_cselect_b64 vcc, -1, 0\ns_cselect_b32 s{S_KV}, s{S_K}, s{S_V}\ns_cselect_b32 s{S_KV+1}, s{S_K+1}, s{S_V+1}")
    E(f"s_cselect_b32 s{sKVM}, 0, {LDS_V0 - LDS_K0}\ns_mov_b32 s{S_KV+2}, 524288\ns_mov_b32 s{S_KV+3}, 0x20000")
    E(f"s_and_b32 s{sT1}, s{sW}, 1\ns_lshl_b32 s{sT1}, s{sT1}, 12\ns_add_u32 s{sT1}, s{sT1}, {LDS_K0}\ns_add_u32 s{sKVM}, s{sKVM}, s{sT1}")
    for i in range(4): E(f"v_cndmask_b32 v{vD0 + i}, v{vVD + i % 2}, v{vKD + i}, vcc")
    att_offsets(C)
    for a in range(2):
        E(f"s_lshl_b32 s{sT1}, s{sW}, 1\ns_add_u32 s{sT1}, s{sT1}, {a}\ns_sub_u32 s{sT3}, s{sT1}, s{sODD}\ns_add_u32 s{sT1}, s{sT3}, 7\ns_sub_u32 s{sT1}, s{sT1}, s{sROT7}")
        E(f"s_cmp_ge_u32 s{sT1}, 7\ns_cselect_b32 s{sT2}, 7, 0\ns_sub_u32 s{sT1}, s{sT1}, s{sT2}\ns_cmp_ge_u32 s{sT3}, 7\ns_cselect_b32 s{sT1}, 7, s{sT1}")
        E(f"s_lshl_b32 s{sT1}, s{sT1}, 12\nv_add_u32 v{vHA + a}, s{sT1}, v{vLANE16}")
    E(f"s_sub_u32 s{sT1}, s{sW}, s{sROT}\ns_and_b32 s{sT1}, s{sT1}, 3\ns_lshl_b32 s{sT1}, s{sT1}, 12\ns_add_u32 s{sT1}, s{sT1}, {LDS_O}")
    E(f"v_add_u32 v{vOA}, s{sT1}, v{vLANE16}\nv_add_u32 v{vOB}, {LDS_O}, v{vLANE16}")
    E(f"s_lshl_b32 s{sM0A}, s{sW}, 14\ns_lshl_b32 s{sM0B}, s{sW}, 12\ns_add_u32 s{sM0B}, s{sM0B}, {LDS_FLAG}")
    E(f"v_mov_b32 v{t[4]}, 0x3f803f80")
    for i in range(4): E(f"v_accvgpr_write_b32 a{aONE + i}, v{t[4]}")
    for i in range(4): E(f"v_mov_b32 v{vMT + i}, 0xff800000")
    E(f"s_mov_b32 s{sREDO}, 0\ns_mov_b32 s{sCQ}, {f32(CQ)}")
    E(f"s_lshl_b32 s{sT1}, s{sRB}, 2\ns_add_u32 s{sT1}, s{sT1}, s{sW}\ns_lshl_b32 s{sT3}, s{sW}, 8")
    E(f"s_lshl_b32 s{sT2}, s{sT1}, 12\ns_sub_u32 s{sT2}, s{sT2}, s{sT3}\nv_lshlrev_b32 v58, 6, v0\nv_add_u32 v58, s{sT2}, v58")
    if OPT['fused']: E(tail_setup())
    for i in range(16): E(f"v_accvgpr_write_b32 a{aL + i}, 0")
    stamp(C, 0)
    m, q = 192, 196
    for jj in range(16):
        E(f"s_waitcnt vmcnt({C.vm.need(('x', jj))})")
        x = vr(vX + 4 * jj)
        E(mfma(vr(m), ar(aONE), x, vr(m) if jj else "0"))
        it = US.next() if jj < OPT['paced'] else None
        if it:
            for p in it[0]: E(p)
        E(mfma(vr(q), x, x, vr(q) if jj else "0"))
        if it:
            E(it[1], it[3])
            for p in it[2]: E(p)
    stamp(C, 1)
    E(f"v_mul_f32 v{m}, {f32(1 / 512)}, v{m}")
    for r in range(1, 4): E(f"v_cmp_eq_u32 vcc, {r}, v{t[3]}\nv_cndmask_b32 v{q}, v{q}, v{q + r}, vcc")
    E(f"v_cmp_eq_u32 vcc, v{t[2]}, v{t[1]}\nv_cndmask_b32 v{q}, 0, v{q}, vcc")
    if US.pos < OPT['singles']: emit_dmas(C, [US.next()])
    xlane(C, "v_add_f32", q, q + 1)
    if US.pos < OPT['singles']: emit_dmas(C, [US.next()])
    rb16 = lambda x: f"v_cvt_pk_bf16_f32 v{x}, v{x}, v{x}\nv_lshlrev_b32 v{x}, 16, v{x}"
    E(f"v_mul_f32 v{q}, {f32(1 / 512)}, v{q}\nv_fma_f32 v{q}, -v{m}, v{m}, v{q}\nv_max_f32 v{q}, 0, v{q}"); E(rb16(q))
    E(f"v_add_f32 v{q}, {f32(1e-5)}, v{q}"); E(rb16(q))
    if US.pos < OPT['singles']: emit_dmas(C, [US.next()])
    E(f"v_sqrt_f32 v{q}, v{q}"); E(rb16(q)); E(rb16(m))
    if US.pos < OPT['singles']: emit_dmas(C, [US.next()])
    E(f"v_rcp_f32 v{q}, v{q}\ns_lshl_b32 s{sT1}, s{sW}, 10\nv_mul_f32 v{q}, s{sCQ}, v{q}\nv_mul_f32 v{m}, v{m}, v{q}\nv_add_u32 v{t[4]}, s{sT1}, v{vLANE16}")
    for jj in range(16):
        for r in range(4):
            x = vX + 4 * jj + r; a, b = 206 + 2 * (r % 2), 207 + 2 * (r % 2)
            E(f"v_lshlrev_b32 v{a}, 16, v{x}\nv_and_b32 v{b}, 0xffff0000, v{x}")
            if r % 2:
                for a, xx in ((206, x - 1), (208, x)): E(f"v_pk_fma_f32 v[{a}:{a + 1}], v[{a}:{a + 1}], v[{q}:{q + 1}], v[{m}:{m + 1}] op_sel_hi:[1,0,0] neg_lo:[0,0,1] neg_hi:[0,0,1]")
                for a, xx in ((206, x - 1), (208, x)): E(f"v_cvt_pk_bf16_f32 v{xx}, v{a}, v{a + 1}")
        E(f"ds_write_b128 v{t[4]}, {vr(vX + 4 * jj)} offset:{LDS_A + jj * 4096}")
        if US.pos < OPT['singles']: emit_dmas(C, [US.next()])
    E("s_waitcnt lgkmcnt(0)\ns_barrier")
    stamp(C, 2)
    F1 = Fill(128, 128 + 118)
    hw = lambda a, tb: f"ds_write_b128 v{vHA + a}, {vr(vQ + (a * 4 + tb) * 4)} offset:{LDS_A + tb * 1024}"
    for a in range(2):
        for tb in range(4):
            for nb in (2 * a, 2 * a + 1):
                gq, uq = vX + (nb * 4 + tb) * 4, vX + ((nb + 4) * 4 + tb) * 4
                for r in range(4): F1.add('p', f"v_mul_f32 v{gq + r}, {f32(-LOG2E / CQ)}, v{gq + r}")
                for r in range(4): F1.add('t', f"v_exp_f32 v{gq + r}, v{gq + r}")
                for r in range(4): F1.add('p', f"v_fma_f32 v{gq + r}, v{gq + r}, s{sCQ}, s{sCQ}")
                for r in range(4): F1.add('t', f"v_rcp_f32 v{gq + r}, v{gq + r}")
                for r in range(4): F1.add('p', f"v_mul_f32 v{gq + r}, v{gq + r}, v{uq + r}")
                h = vQ + (a * 4 + tb) * 4 + 2 * (nb % 2)
                F1.add('p', f"v_cvt_pk_bf16_f32 v{h}, v{gq}, v{gq + 1}\nv_cvt_pk_bf16_f32 v{h + 1}, v{gq + 2}, v{gq + 3}")
    F2 = Fill(257, 256 + 56)
    for k, (qb, j) in enumerate((qb, j) for qb in range(4) for j in range(4)):
        lo, hi, d = aO + (2 * j * 4 + qb) * 4, aO + ((2 * j + 1) * 4 + qb) * 4, vQ + (qb * 4 + j) * 4
        for hh, src in enumerate((lo, hi)):
            for r in range(4): F2.add('p', f"v_accvgpr_read_b32 v{t[4 * hh + r]}, a{src + r}")
        if k: F2.add('p', prev)
        F2.add('p', f"v_cvt_pk_bf16_f32 v{d}, v{t[0]}, v{t[1]}\nv_cvt_pk_bf16_f32 v{d + 2}, v{t[4]}, v{t[5]}")
        F2.add('p', f"v_cvt_pk_bf16_f32 v{d + 1}, v{t[2]}, v{t[3]}\nv_cvt_pk_bf16_f32 v{d + 3}, v{t[6]}, v{t[7]}")
        prev = f"v_permlane16_swap_b32 v{d}, v{d + 2}\nv_permlane16_swap_b32 v{d + 1}, v{d + 3}"
    F2.add('p', prev)
    bursts = {128 + 71: [(hw(0, tb), 'h') for tb in range(4)], 128 + 119: [(hw(1, tb), 'h') for tb in range(4)]}
    if OPT['kvearly']:
        fp = first_pieces()
        bursts[128 + 127] = [(fp[0][0][0], None), ("s_nop 0", None)] + [(x[1], 'kv0') for x in fp[:4]]
        bursts[256 + 7] = [(fp[4][0][0], None), ("s_nop 0", None)] + [(x[1], 'kv0') for x in fp[4:]] + [(x, None) for x in fp[7][2]]
    else: US.after = first_pieces()
    groups = front_groups('gu', 0, xacc, 'q') + front_groups('q', 32, lambda nb, tb: ar(aO + (nb * 4 + tb) * 4), 'd') + front_groups('d', 64, xacc, None)
    run_gemm(C, groups, US, [F1, F2], bars={128 + 61: None, 128 + 120: 'h'}, marks={128: 3, 256: 4}, bursts=bursts)
    stamp(C, 5)
    flush(C, F2)
    E(f"s_waitcnt vmcnt({C.vm.need('kv0')})\ns_barrier")
    for n in range(8): E(kread(ar(aPre(n)), n % 4, (n // 4) * 4096)[0], ('k0', n))
    E(f"s_mul_i32 s{sT1}, s{sW}, {1024 * OPT['per']}\nv_add_u32 v{vDA}, s{sT1}, v{vLANE16}")
    F = Fill()
    for a in range(4):
        for tb in range(4):
            lo = vX + ((2 * a) * 4 + tb) * 4; hi = lo + 16
            for r, x in enumerate((lo, lo + 2, hi, hi + 2)): F.add('p', f"v_cvt_pk_bf16_f32 v{lo + r}, v{x}, v{x + 1}")
            if a < 2: F.add('w', f"ds_write_b128 v{vDA}, {vr(lo)} offset:{stage(a * 4 + tb)}")
            else:
                for r in range(4): F.add('p', f"v_accvgpr_write_b32 a{aD + ((a - 2) * 4 + tb) * 4 + r}, v{lo + r}")
        if a == 0: flush(C, F)
    t1 = [(p, d, q_, 't1') for p, d, q_, _ in tile_dma('k', 1) + tile_dma('v', 1)]
    for n in range(8):
        E(f"s_waitcnt lgkmcnt({C.lg.need(('k0', n))})")
        for qb in range(4):
            E(qk_mfma(n, qb, vS[0], ar(aPre(n)), zero=True))
            if qb == 0: emit_dmas(C, [t1.pop(0)]); continue
            room = 3
            while F.q and room > 0:
                kind, text, tag = F.q.pop(0); E(text, tag); room -= F.W[kind]
    flush(C, F)
    E(f"s_sub_u32 s{sT1}, s{sM0A}, s{sRING}\ns_sub_u32 s{sT2}, s{sM0B}, s{sRING}")
    for b in range(4): E(f"v_add_u32 v{vANAT + b}, s{sT2}, v{vAACC + b}\nv_add_u32 v{vAACC + b}, s{sT1}, v{vAACC + b}")
    E(f"v_and_b32 v{vIDX}, 1, v0\nv_mul_u32_u24 v{vIDX}, 0xaaaa, v{vIDX}\nv_add_u32 v{vIDX}, 0x4444, v{vIDX}")
    A("L_max:")
    for j in range(2): E(group_reads(j, 8192, 0)[0], (0, j))
    for qb in range(4):
        x, y, mm = vS[0] + qb * 4, vS[0] + (4 + qb) * 4, vE + qb
        E(f"v_max3_f32 v{mm}, v{x}, v{x+1}, v{vMT + qb}\nv_max3_f32 v{mm}, v{x+2}, v{x+3}, v{mm}\nv_max3_f32 v{mm}, v{y}, v{y+1}, v{mm}\nv_max3_f32 v{mm}, v{y+2}, v{y+3}, v{mm}")
    for op in ("v_permlane32_swap_b32", "v_permlane16_swap_b32"):
        for qb in range(4): E(f"v_mov_b32 v{vE + 4 + qb}, v{vE + qb}")
        for qb in range(4): E(f"{op} v{vE + qb}, v{vE + 4 + qb}")
        for qb in range(4): E(f"v_max_f32 v{vE + qb}, v{vE + qb}, v{vE + 4 + qb}")
    for qb in range(4):
        for r in range(4): E(f"v_sub_f32 v{vNM + 4 * qb + r}, 0, v{vE + qb}")
    for qb in range(4):
        x, y = vS[0] + qb * 4, vS[0] + (4 + qb) * 4
        for r in range(4): E(f"v_sub_f32 v{x + r}, v{x + r}, v{vE + qb}\nv_sub_f32 v{y + r}, v{y + r}, v{vE + qb}")
    E(f"s_mov_b32 s{sIT}, 0\ns_waitcnt lgkmcnt(1)")
    stamp(C, 6)
    cy = step(C, 0, 8192, 0, [group_reads(0, 16384, 0), group_reads(1, 16384, 0)], [], pv=False)
    ext = {8 + j: [f"v_add_u32 v{vKA + j}, {LDS_K - LDS_K0}, v{vKA + j}"] for j in range(4)}
    for db in range(8): ext.setdefault(min(8 + db, 15) if db > 1 else 7 + db, []).append(f"v_add_u32 v{vVA + db}, {LDS_V - LDS_V0}, v{vVA + db}")
    wt = [([], f"buffer_load_dword a96, v58, {srd(S_WO)}, 0 offen", [], None)] if OPT['wotouch'] else []
    step(C, 1, 16384, 0, [group_reads(0, 16384, 0), group_reads(1, 16384, 0)], [(p, d, q_, ('t', 2)) for p, d, q_, _ in tile_dma('k', 2) + tile_dma('v', 2)] + wt,
         sync=lambda: C.vm.need('t1'), zero=True, extra=ext, carry=cy)
    if OPT['fused']:
        E(f"s_or_b32 s{sT1}, s2, s{sW}\ns_cmp_eq_u32 s{sT1}, 0\ns_cbranch_scc0 L_notok\nv_mov_b32 v{t[0]}, s{sCAND}\nv_mov_b32 v{t[1]}, 0\ns_mov_b64 exec, 1")
        A(f"global_atomic_cmpswap v{t[1]}, v[{t[0]}:{t[1]}], s[84:85] sc1\ns_mov_b64 exec, -1\nL_notok:")
    for k in range(8): E(f"ds_write_b128 v{vDA}, {ar(aD + 4 * k)} offset:{stage(8 + k)}")
    E(f"s_mov_b32 s{S_DS}, s{S_WS}\ns_mov_b32 s{S_DS + 1}, s{S_WS + 1}\ns_mov_b32 s{S_DS + 3}, 0x20000\ns_mov_b32 s{sDOFF}, 0")
    E(f"s_cmp_eq_u32 s{sREDO}, 0\ns_cselect_b32 s{S_DS + 2}, {0 if OPT['xds'] else 16384}, 0\ns_or_b32 s{sT1}, s{sREDO}, s{sW}\ns_cmp_eq_u32 s{sT1}, 0\ns_cselect_b32 s{sTRIG}, {5 if OPT['per'] == 4 else 8}, -1")
    E("s_waitcnt lgkmcnt(0)")
    stamp(C, 7)
    A(".p2align 6\nL_loop:")
    C.lg.tag[(C.sid, 1)] = C.lg.n
    iteration(C, 0); iteration(C, 1)
    iteration(C, 2, tail=(f"s_add_u32 s{sIT}, s{sIT}, 1", f"s_cmp_lt_u32 s{sIT}, 10", "s_cbranch_scc1 L_loop"),
              hook=(f"s_cmp_eq_u32 s{sIT}, s{sTRIG}", "s_cbranch_scc1 L_dready", "L_dback:") if OPT['fused'] else ())
    C.vm.tag['t32'] = C.vm.n
    stamp(C, 8)
    UO = UnitStream(o_units(), lambda u: f"s_add_u32 m0, s{sM0A if u % 6 < 4 else sM0B}, {(u % 6) * 4096 if u % 6 < 4 else (5 - u % 6) * 16384}")
    E(o_off(0))
    if OPT['fused']:
        E(f"s_lshl_b32 s{sT1}, s{sRB}, 2\nv_mov_b32 v{t[1]}, 0\nv_mov_b32 v{t[3]}, s{sT1}")
        A(f"global_load_dword v{t[0]}, v{t[1]}, s[84:85] sc1\nglobal_load_dword v{t[2]}, v{t[3]}, s[84:85] offset:128 sc1"); C.vm.issue(); C.vm.issue('t32')
        slice_srd(C, S_DP, sG)
    cy = step(C, 0, 16384, 16384, [vread(aF, 0, 16384 + 8192), vread(aF + 4, 1, 16384 + 8192)], [UO.next() for _ in range(12)])
    step(C, 1, 0, 16384 + 8192, [vread(aF, 0, 32768), vread(aF + 4, 1, 32768)], [], sync=lambda: C.vm.need('t32'), qk=False, carry=cy)
    dl = []
    if OPT['fused']:
        E(f"v_readfirstlane_b32 s{sT1}, v{t[2]}\ns_nop 0\ns_cmp_eq_u32 s{sT1}, {8 if OPT['early'] else 99}\ns_cselect_b32 s{sEARLY}, 1, 0\ns_mov_b32 s{sDPN}, s{S_DP + 2}\ns_cselect_b32 s{S_DP + 2}, s{S_DP + 2}, 0")
        dl = [([f"s_mov_b32 s{sST}, {(k // 2) << 21}"] if k % 2 == 0 else [], f"buffer_load_dwordx4 {ar(aD + 4 * k)}, v{vLANE16}, {srd(S_DP)}, s{sST} offen offset:{(k % 2) * 1024} sc1", [], 'dl') for k in range(16)]
    for n in range(8, 16):
        rd = vread(aF + 4 * ((n + 2) % 4), n + 2 - 8, 32768) if n + 2 < 16 else []
        for qb in range(4):
            E(pv_mfma(n, qb, 1))
            if qb == 0:
                for x in rd: E(x)
            if qb == 1 and n < 12 and OPT['wo3']: emit_dmas(C, [UO.next()])
            if qb in (1, 2) and n >= 12 and dl: emit_dmas(C, [dl.pop(0)], nop=False)
            if qb == 2 and n < 12: E(f"v_accvgpr_read_b32 v{vE + n - 8}, a{aL + 4 * (n - 8)}\nv_accvgpr_read_b32 v{vE + n - 4}, a{aL + 4 * (n - 8) + 1}")
            if qb == 3 and n < 15: E(f"s_waitcnt lgkmcnt({len(rd)})")
    stamp(C, 9)
    for qb in range(4): E(f"v_add_f32 v{vE + qb}, v{vE + qb}, v{vE + 4 + qb}")
    E(f"s_mov_b32 s{sT1}, {f32(2.0 ** OPT['thr'])}\nv_mov_b32 v{vE + 4}, 0")
    for qb in range(4): E(f"v_cmp_nlt_f32 vcc, v{vE + qb}, s{sT1}\nv_rcp_f32 v{vE + qb}, v{vE + qb}\nv_cndmask_b32 v{vE + 4}, v{vE + 4}, 1, vcc")
    E(f"s_lshl_b32 s{sT1}, s{sW}, 8\ns_add_u32 s{sT1}, s{sT1}, {LDS_FLAG}\nv_lshl_add_u32 v{vE + 5}, v0, 2, s{sT1}")
    for w in range(4): E(f"ds_write_b32 v{vE + 5}, v{vE + 4} offset:{4096 * w}")
    for a in range(4):
        for qb in range(4):
            b = vS[0] + qb * 16
            for hh in range(2):
                for r in range(4): E(f"v_accvgpr_read_b32 v{b + 4 * hh + r}, a{aO + ((2 * a + hh) * 4 + qb) * 4 + r}")
            rl = vE + (qb & ~1); sel = qb & 1
            if not OPT['pk']:
                for r in range(8): E(f"v_mul_f32 v{b + r}, v{b + r}, v{vE + qb}")
            for r in (range(0, 8, 2) if OPT['pk'] else ()): E(f"v_pk_mul_f32 v[{b + r}:{b + r + 1}], v[{b + r}:{b + r + 1}], v[{rl}:{rl + 1}] op_sel:[0,{sel}] op_sel_hi:[1,{sel}]")
            for r in range(4): E(f"v_cvt_pk_bf16_f32 v{b + 8 + r}, v{b + 2 * r}, v{b + 2 * r + 1}")
            E(f"ds_write_b128 v{vOA}, {vr(b + 8)} offset:{a * 16384 + qb * 1024}")
            if dl: emit_dmas(C, [dl.pop(0)], nop=False)
    E(f"v_lshl_add_u32 v{vE + 5}, v0, 2, s{sM0B}\ns_waitcnt lgkmcnt(0)\ns_barrier")
    for w in range(4): E(f"ds_read_b32 v{vE + 6 + w}, v{vE + 5} offset:{256 * w}")
    E(f"s_waitcnt lgkmcnt(0)\nv_or_b32 v{vE + 6}, v{vE + 6}, v{vE + 7}\nv_or3_b32 v{vE + 6}, v{vE + 6}, v{vE + 8}, v{vE + 9}")
    E(f"v_cmp_ne_u32 vcc, 0, v{vE + 6}\ns_cmp_eq_u32 s{sREDO}, 0\ns_cselect_b64 s[{sC0}:{sC1}], vcc, 0\ns_cmp_lg_u64 s[{sC0}:{sC1}], 0\ns_cbranch_scc1 L_slow")
    stamp(C, 10)
    e0 = 8 * OPT['h0'] + 4 * (16 - OPT['h0'])
    Fs = [Fill(e0 + 1, e0 + 9), Fill(121, 128), Fill()]
    for a, r in enumerate((sST, 67, 68, 69)):
        E(f"s_mov_b32 s{r}, {(16 << 20) + a * 4096}")
        pack_store(Fs[0 if a < 2 else (a - 1 if OPT['quart'] else 2)], a, r)
    FG = Fill(16, 108)
    if OPT['fused']:
        for f in range(2):
            d = vG + 8 * f
            for k in range(8):
                for r in range(4):
                    x = vG + 16 + 4 * (r % 2) + 8 * (k % 2); a = d + 2 * r if k == 0 else x + 1
                    FG.add('p', f"v_accvgpr_read_b32 v{x}, a{aD + 4 * (2 * k + f) + r}\nv_lshlrev_b32 v{a}, 16, v{x}\nv_and_b32 v{a + 1}, 0xffff0000, v{x}")
                    if k: FG.add('p', f"v_add_f32 v{d + 2 * r}, v{d + 2 * r}, v{a}\nv_add_f32 v{d + 2 * r + 1}, v{d + 2 * r + 1}, v{a + 1}")
            silu(FG.add, d, vG + 32)
    E(f"s_mov_b32 s{s16K}, 16384")
    FX = Fill(108, 112); FP = Fill(OPT.get('pollat', 120), 128)
    if OPT['fused']:
        for x in x_loads(): FX.add('v', x)
        FP.add('v', POLL, 'poll0')
    run_gemm(C, o_groups(), UO, [FP, Fs[0], Fs[1], FX, FG], after_tag={16: 'dl'} if OPT['fused'] else None)
    stamp(C, 11)
    assert not (FG.q or FX.q or FP.q)
    for F in Fs: flush(C, F)
    if OPT['fused']: tail(C)
    if OPT['dbg']:
        E(f"s_waitcnt vmcnt(0)\ns_memrealtime s[100:101]\ns_waitcnt lgkmcnt(0)\ns_sub_u32 s100, s100, s96\ns_cmp_lt_u32 s2, 12\ns_cbranch_scc0 L_end\ns_cmp_eq_u32 s{sW}, 0\ns_cbranch_scc0 L_end")
        E("s_lshl_b32 s4, s2, 2\nv_mov_b32 v2, s4\nv_mov_b32 v3, s100\ns_mov_b64 exec, 1\nglobal_store_dword v2, v3, s[84:85] offset:8")
    if OPT['stamps']:
        E("s_waitcnt vmcnt(0)"); stamp(C, 14 if OPT['fused'] else 12)
        E(f"s_memrealtime s[100:101]\ns_waitcnt lgkmcnt(0)\nv_writelane_b32 v55, s100, 18\nv_writelane_b32 v55, s96, 17\nv_writelane_b32 v55, s98, 16")
        E(f"s_load_dwordx2 s[4:5], s[0:1], 88\ns_waitcnt lgkmcnt(0)\ns_add_u32 s4, s4, {64 << 20}\ns_addc_u32 s5, s5, 0\ns_mov_b32 s6, 0x100000\ns_mov_b32 s7, 0x20000")
        E(f"s_lshl_b32 s{sT1}, s2, 2\ns_add_u32 s{sT1}, s{sT1}, s{sW}\ns_lshl_b32 s{sT1}, s{sT1}, 8\nv_lshlrev_b32 v2, 2, v0\nbuffer_store_dword v55, v2, s[4:7], s{sT1} offen")
    A("L_end:\ns_endpgm")
    if OPT['fused']:
        A("L_dready:")
        E(f"s_lshl_b32 s{sT1}, s{sRB}, 2\nv_mov_b32 v{t[0]}, s{sT1}\nv_mov_b32 v{t[1]}, 1\ns_mov_b64 exec, 1")
        A(f"global_atomic_add v{t[0]}, v{t[1]}, s[84:85] offset:128 sc1\ns_mov_b64 exec, -1\ns_branch L_dback")
    A("L_slow:")
    E(f"s_waitcnt vmcnt(0)\ns_mov_b32 s{sREDO}, 1\ns_mov_b32 s{sIT}, 0\ns_lshl_b32 s{sKOFF}, s{sW}, 12\ns_mov_b32 m0, s{sKM0}")
    A("L_slow_loop:")
    E("s_barrier")
    for i in range(4): E(kdma(i))
    E(f"s_add_u32 s{sKOFF}, s{sKOFF}, 16384\ns_waitcnt vmcnt(0)\ns_barrier")
    for kb in range(4):
        for j in range(4): E(kread(ar(aPre(j)), j, kb * 4096)[0])
        E("s_waitcnt lgkmcnt(0)")
        for j in range(4):
            for qb in range(4): E(qk_mfma(j, qb, vS[0], ar(aPre(j)), zero=True))
        for qb in range(4):
            x = vS[0] + qb * 4
            E(f"v_max3_f32 v{vMT + qb}, v{x}, v{x+1}, v{vMT + qb}\nv_max3_f32 v{vMT + qb}, v{x+2}, v{x+3}, v{vMT + qb}")
    E(f"s_add_u32 s{sIT}, s{sIT}, 1\ns_cmp_lt_u32 s{sIT}, 32\ns_cbranch_scc1 L_slow_loop\ns_barrier")
    for i in range(16): E(f"v_accvgpr_write_b32 a{aL + i}, 0")
    for j in range(4): E(f"v_subrev_u32 v{vKA + j}, {LDS_K - LDS_K0}, v{vKA + j}")
    for db in range(8): E(f"v_subrev_u32 v{vVA + db}, {LDS_V - LDS_V0}, v{vVA + db}")
    att_offsets(C)
    E(f"s_mul_i32 s{sT1}, s{sW}, {1024 * OPT['per']}\nv_add_u32 v{vDA}, s{sT1}, v{vLANE16}")
    emit_dmas(C, first_pieces() + tile_dma('k', 1) + tile_dma('v', 1))
    E("s_waitcnt vmcnt(0)\ns_barrier")
    for n in range(8): E(kread(ar(aPre(n)), n % 4, (n // 4) * 4096)[0])
    E("s_waitcnt lgkmcnt(0)")
    for n in range(8):
        for qb in range(4): E(qk_mfma(n, qb, vS[0], ar(aPre(n)), zero=True))
    E("s_nop 7\ns_branch L_max")
    return A

def final_kernel():
    A = Asm()
    A("final_kernel:")
    A("s_cmp_ge_u32 s2, 256\ns_cbranch_scc1 L_fend")
    if OPT['stamps']: A("s_memrealtime s[30:31]")
    A("s_load_dwordx2 s[20:21], s[0:1], 0\ns_load_dwordx2 s[22:23], s[0:1], 72\ns_load_dwordx2 s[24:25], s[0:1], 88")
    A("v_lshrrev_b32 v1, 6, v0\nv_and_b32 v0, 63, v0\nv_readfirstlane_b32 s3, v1")
    A("s_lshr_b32 s16, s2, 3\ns_and_b32 s17, s2, 7")
    A("s_lshl_b32 s17, s17, 3\ns_lshl_b32 s3, s3, 1\ns_add_u32 s17, s17, s3")
    A("s_lshl_b32 s18, s16, 16\ns_lshl_b32 s19, s17, 10\ns_add_u32 s18, s18, s19")
    A("v_lshlrev_b32 v1, 4, v0\ns_waitcnt lgkmcnt(0)")
    A(f"s_add_u32 s4, s24, s18\ns_addc_u32 s5, s25, 0\ns_sub_u32 s6, {32 << 20}, s18\ns_mov_b32 s7, 0x20000")
    A(f"s_mov_b32 s8, s20\ns_mov_b32 s9, s21\ns_mov_b32 s10, {2 << 20}\ns_mov_b32 s11, 0x20000")
    A(f"s_mov_b32 s12, s22\ns_mov_b32 s13, s23\ns_mov_b32 s14, {2 << 20}\ns_mov_b32 s15, 0x20000")
    A("s_mov_b32 s26, 0")
    for k in range(16):
        for f in range(2): A(f"buffer_load_dwordx4 {vr(16 + (f * 16 + k) * 4)}, v1, s[4:7], s26 offen offset:{f * 1024}")
        if k < 15: A(f"s_add_u32 s26, s26, {2 << 20}")
    A("s_and_b32 s27, s17, 3\ns_lshl_b32 s27, s27, 4\ns_lshl_b32 s28, s16, 6\ns_add_u32 s27, s27, s28\ns_lshl_b32 s27, s27, 10")
    A("s_lshr_b32 s28, s17, 2\ns_lshl_b32 s28, s28, 6\ns_add_u32 s27, s27, s28")
    A("v_and_b32 v2, 15, v0\nv_lshrrev_b32 v3, 4, v0\nv_lshlrev_b32 v2, 10, v2\nv_lshl_add_u32 v2, v3, 3, v2\nv_add_u32 v2, s27, v2\nv_add_u32 v3, 16384, v2")
    for f in range(2):
        A(f"buffer_load_dwordx2 {vr(4 + 4 * f, 2)}, v{2 + f}, s[8:11], 0 offen\nbuffer_load_dwordx2 {vr(6 + 4 * f, 2)}, v{2 + f}, s[8:11], 0 offen offset:32")
    acc = lambda f, kind: 144 + (f * 2 + kind) * 8
    for k in range(16):
        for f in range(2):
            A(f"s_waitcnt vmcnt({35 - 2 * k - f})")
            src = 16 + (f * 16 + k) * 4; d = acc(f, k // 8)
            for r in range(4):
                if k % 8 == 0:
                    A(f"v_lshlrev_b32 v{d + 2 * r}, 16, v{src + r}\nv_and_b32 v{d + 2 * r + 1}, 0xffff0000, v{src + r}")
                else:
                    A(f"v_lshlrev_b32 v12, 16, v{src + r}\nv_and_b32 v13, 0xffff0000, v{src + r}\nv_add_f32 v{d + 2 * r}, v{d + 2 * r}, v12\nv_add_f32 v{d + 2 * r + 1}, v{d + 2 * r + 1}, v13")
    A("s_waitcnt vmcnt(0)")
    for f in range(2):
        d, s = acc(f, 0), acc(f, 1)
        for e in range(8): A(f"v_mul_f32 v{16 + e}, {f32(-math.log2(math.e))}, v{d + e}")
        for e in range(8): A(f"v_exp_f32 v{16 + e}, v{16 + e}")
        for e in range(8): A(f"v_add_f32 v{16 + e}, 1.0, v{16 + e}")
        for e in range(8): A(f"v_rcp_f32 v{16 + e}, v{16 + e}")
        for e in range(8): A(f"v_mul_f32 v{d + e}, v{d + e}, v{16 + e}")
        for r in range(4):
            x = 4 + 4 * f + r
            A(f"v_lshlrev_b32 v12, 16, v{x}\nv_and_b32 v13, 0xffff0000, v{x}")
            A(f"v_fma_f32 v12, v{s + 2 * r}, v{d + 2 * r}, v12\nv_fma_f32 v13, v{s + 2 * r + 1}, v{d + 2 * r + 1}, v13\nv_cvt_pk_bf16_f32 v{x}, v12, v13")
        A(f"buffer_store_dwordx2 {vr(4 + 4 * f, 2)}, v{2 + f}, s[12:15], 0 offen\nbuffer_store_dwordx2 {vr(6 + 4 * f, 2)}, v{2 + f}, s[12:15], 0 offen offset:32")
    if OPT['stamps']:
        A(f"s_waitcnt vmcnt(0)\ns_memrealtime s[32:33]\ns_waitcnt lgkmcnt(0)\ns_add_u32 s4, s24, {65 << 20}\ns_addc_u32 s5, s25, 0\ns_mov_b32 s6, 0x100000")
        A("s_lshl_b32 s26, s2, 3\nv_mov_b32 v2, 0\nv_mov_b32 v4, s30\nv_mov_b32 v5, s32\nbuffer_store_dwordx2 v[4:5], v2, s[4:7], s26 offen")
    A("L_fend:\ns_endpgm")
    return A

def descriptor(name, vg, acc, sg=102):
    return (f".amdhsa_kernel {name}\n  .amdhsa_next_free_vgpr {vg}\n  .amdhsa_next_free_sgpr {sg}\n  .amdhsa_accum_offset {acc}\n"
            f"  .amdhsa_group_segment_fixed_size 0\n  .amdhsa_kernarg_size 96\n  .amdhsa_user_sgpr_count 2\n"
            f"  .amdhsa_user_sgpr_kernarg_segment_ptr 1\n  .amdhsa_system_sgpr_workgroup_id_x 1\n"
            f"  .amdhsa_float_denorm_mode_32 3\n.end_amdhsa_kernel\n")

def build(verbose=False):
    head = [l for l in open(f"cdna_kernels/{NAME}.s.ref").read().split("\n") if l.startswith(";") and "@launch" not in l and "Override launch" not in l and "grid=ceil" not in l]
    out = "\n".join(head) + "\n"
    if OPT['fused']:
        out += f"; @launch grid=(256,1,1) block=(256,1,1) lds={LDS_TOTAL}\n"
        kernels = [(NAME + "_kernel", main_kernel, (512, 256))]
    else:
        out += f"; @launch kernel=main_kernel grid=(256,1,1) block=(256,1,1) lds={LDS_TOTAL}\n"
        out += "; @launch kernel=final_kernel grid=(256,1,1) block=(256,1,1) lds=0\n"
        kernels = [("main_kernel", main_kernel, (512, 256)), ("final_kernel", final_kernel, (176, 176, 40))]
    out += '.amdgcn_target "amdgcn-amd-amdhsa--gfx950"\n.text\n'
    for name, fn, _ in kernels:
        A = fn(); A.fix_hazards(verbose)
        out += f".globl {name}\n.p2align 8\n.type {name},@function\n" + A.text()
    out += '.section .rodata,"a"\n'
    for name, _, d in kernels: out += ".p2align 6\n" + descriptor(name, *d)
    return out

if __name__ == "__main__":
    dst = sys.argv[1] if len(sys.argv) > 1 else f"cdna_kernels/{NAME}.s"
    for a in sys.argv[2:]:
        k, v = a.split("="); OPT[k] = int(v)
    open(dst, "w").write(build(verbose=True))
```
